```python
import torch

def _softmax(x, axis=-1):
    return torch.softmax(x, dim=axis)

def _gelu(x):
    return torch.nn.functional.gelu(x, approximate='tanh')

def _silu(x):
    return torch.nn.functional.silu(x)

def _sigmoid(x):
    return torch.sigmoid(x)

def _layernorm(x, axis=-1, eps=1e-05):
    m = x.mean(dim=axis, keepdim=True)
    v = x.var(dim=axis, keepdim=True, unbiased=False)
    return (x - m) / torch.sqrt(v + eps)

def _scatter_add(tgt, idx, src, axis=0):
    return tgt.clone().index_add_(axis, idx, src)

def _segment_sum(src, seg, n):
    out = torch.zeros((n,) + src.shape[1:], dtype=src.dtype)
    return out.index_add_(0, seg, src)

def _pad(x, pw):
    flat = tuple((v for pair in reversed(pw) for v in pair))
    return torch.nn.functional.pad(x, flat)
kernel_name = 'sequential_preLN__memory_aug_recurrent_mem_tr__glu_gated_bilinear__prompt'

def setup_inputs():

    _w = lambda a: (lambda t: t.to(torch.bfloat16) if t.is_floating_point() else t)(torch.as_tensor(a))

    def _A_setup():
        B, S, Dm = (1, 2048, 512)
        H, Dh = (32, 128)
        M, seg = (8, 32)
        seg = min(seg, S)
        S = S // seg * seg
        return {'x': _w((lambda *s: torch.randn(*s, dtype=torch.bfloat16) * 0.05)(B, S, Dm)), 'mem0': _w((lambda *s: torch.randn(*s, dtype=torch.bfloat16) * 0.2)(B, M, Dm)), 'Wq': _w((lambda *s: torch.randn(*s, dtype=torch.bfloat16) * 1.6)(Dm, H, Dh) * Dm ** (-0.5)), 'Wk': _w((lambda *s: torch.randn(*s, dtype=torch.bfloat16) * 1.6)(Dm, H, Dh) * Dm ** (-0.5)), 'Wv': _w((lambda *s: torch.randn(*s, dtype=torch.bfloat16) * 0.2)(Dm, H, Dh) * Dm ** (-0.5)), 'Wo': _w((lambda *s: torch.randn(*s, dtype=torch.bfloat16) * 0.2)(H, Dh, Dm) * (H * Dh) ** (-0.5)), 'seg_len': seg}
    _A_in = _A_setup()

    def _B_setup():
        B, S, D, F = (1, 2048, 512, 1792)
        return {'x': _w((lambda *s: torch.randn(*s, dtype=torch.bfloat16) * 0.05)(B, S, D)), 'w_gate': _w((lambda *s: torch.randn(*s, dtype=torch.bfloat16) * 0.2)(D, F) * D ** (-0.5)), 'w_up': _w((lambda *s: torch.randn(*s, dtype=torch.bfloat16) * 0.2)(D, F) * D ** (-0.5)), 'w_down': _w((lambda *s: torch.randn(*s, dtype=torch.bfloat16) * 0.2)(F, D) * F ** (-0.5))}
    _B_in = _B_setup()
    return {'A_x': _A_in['x'], 'A_mem0': _A_in['mem0'], 'A_Wq': _A_in['Wq'], 'A_Wk': _A_in['Wk'], 'A_Wv': _A_in['Wv'], 'A_Wo': _A_in['Wo'], 'A_seg_len': _A_in['seg_len'], 'B_x': _B_in['x'], 'B_w_gate': _B_in['w_gate'], 'B_w_up': _B_in['w_up'], 'B_w_down': _B_in['w_down']}

def reference(A_x, A_mem0, A_Wq, A_Wk, A_Wv, A_Wo, A_seg_len, B_x, B_w_gate, B_w_up, B_w_down):

    def _A_ref(x, mem0, Wq, Wk, Wv, Wo, seg_len):
        B, S, Dm = x.shape
        H, Dh = (Wq.shape[1], Wq.shape[2])
        M = mem0.shape[1]
        scale = Dh ** (-0.5)
        n_seg = S // seg_len
        L = M + seg_len
        idx = torch.arange(L)
        mask = (idx[:, None] < M) | (idx[:, None] >= idx[None, :])
        mem = mem0
        outs = []
        for s in range(n_seg):
            xs = x[:, s * seg_len:(s + 1) * seg_len, :].clone()
            h = torch.concatenate([mem, xs], axis=1)
            q = torch.einsum('btd,dhe->bhte', h, Wq)
            k = torch.einsum('btd,dhe->bhte', h, Wk)
            v = torch.einsum('btd,dhe->bhte', h, Wv)
            scores = torch.einsum('bhqe,bhke->bhqk', q, k) * scale
            scores = torch.where(mask[None, None], scores, -1000000000.0)
            p = _softmax(scores, axis=-1)
            o = torch.einsum('bhqk,bhke->bhqe', p, v)
            o = torch.einsum('bhte,hed->btd', o, Wo)
            mem = o[:, :M, :].clone()
            outs.append(o[:, M:, :])
        return torch.concatenate(outs, axis=1)

    def _B_ref(x, w_gate, w_up, w_down):
        g = torch.einsum('bsd,df->bsf', x, w_gate)
        u = torch.einsum('bsd,df->bsf', x, w_up)
        h = g * u
        return torch.einsum('bsf,fd->bsd', h, w_down)
    x = A_x
    h = x + _A_ref(_layernorm(x, axis=-1), A_mem0, A_Wq, A_Wk, A_Wv, A_Wo, A_seg_len)
    h2 = h + _B_ref(_layernorm(h, axis=-1), B_w_gate, B_w_up, B_w_down)
    return h2
```

```python
from gen import *
import gen

SCALE = "0x3db504f3"
LOG2E = "0x3fb8aa3b"

MEMI, KXI, QI, KI, OI, RED, WOI = 0, 8192, 16384, 18432, 20480, 22528, 26624
REC_LDS = 157696
POLL_CAP = 1 << 17

def round_scale(a, regs, t0):
    for i in range(0, len(regs), 2):
        r0, r1 = regs[i], regs[i+1]
        a(f"v_cvt_pk_bf16_f32 v{t0}, v{r0}, v{r1}")
        a(f"v_lshlrev_b32 v{r0}, 16, v{t0}")
        a(f"v_and_b32 v{r1}, 0xffff0000, v{t0}")
        a(f"v_mul_f32 v{r0}, {SCALE}, v{r0}")
        a(f"v_mul_f32 v{r1}, {SCALE}, v{r1}")
        a(f"v_cvt_pk_bf16_f32 v{t0}, v{r0}, v{r1}")
        a(f"v_lshlrev_b32 v{r0}, 16, v{t0}")
        a(f"v_and_b32 v{r1}, 0xffff0000, v{t0}")

def softmax_regs(a, regs, tm, ts, tt):
    a(f"v_max_f32 v{tm}, v{regs[0]}, v{regs[1]}")
    for r in regs[2:]:
        a(f"v_max_f32 v{tm}, v{tm}, v{r}")
    allreduce_groups(a, "v_max_f32", tm, tt)
    for r in regs:
        a(f"v_sub_f32 v{r}, v{r}, v{tm}")
        a(f"v_mul_f32 v{r}, {LOG2E}, v{r}")
        a(f"v_exp_f32 v{r}, v{r}")
    a("s_nop 0")
    a(f"v_add_f32 v{ts}, v{regs[0]}, v{regs[1]}")
    for r in regs[2:]:
        a(f"v_add_f32 v{ts}, v{ts}, v{r}")
    allreduce_groups(a, "v_add_f32", ts, tt)
    a(f"v_rcp_f32 v{ts}, v{ts}")
    a("s_nop 0")
    for r in regs:
        a(f"v_mul_f32 v{r}, v{r}, v{ts}")

def gen_rec(a):
    name = "rec_kernel"
    kernel_header(a, name)
    lend = a.newlabel("rend")
    a(f"""
    s_cmp_ge_u32 s2, 32
    s_cbranch_scc1 {lend}
    s_load_dwordx2 s[4:5], s[0:1], {KA_WS}
    v_and_b32 v1, 63, v0
    v_lshrrev_b32 v2, 6, v0
    s_nop 0
    v_readfirstlane_b32 s20, v2
    s_waitcnt lgkmcnt(0)
    """)
    srd(a, 8, 4, WS_BYTES)
    a("""
    v_and_b32 v2, 15, v1          ; m
    v_lshrrev_b32 v3, 4, v1       ; g
    v_and_b32 v18, 7, v1          ; m&7
    """)
    a("s_lshl_b32 s21, s2, 3\ns_add_u32 s21, s21, s20\ns_lshl_b32 s21, s21, 14")
    a("v_lshl_add_u32 v19, v1, 4, s21")
    for j in range(3):
        a(f"v_add_u32 v20, {hex(WQKV + j*4*MB)}, v19")
        for kk in range(16):
            if kk % 4 == 0 and kk:
                a("v_add_u32 v20, 0x1000, v20")
            r = 64 + j*64 + kk*4
            a(f"buffer_load_dwordx4 v[{r}:{r+3}], v20, s[8:11], 0 offen offset:{(kk%4)*1024}")
    a("s_lshl_b32 s21, s20, 19")
    a("s_lshl_b32 s22, s2, 12")
    a("s_add_u32 s21, s21, s22")
    a(f"s_add_u32 s21, s21, {hex(WO)}")
    a("v_lshl_add_u32 v20, v1, 4, s21")
    a("s_lshl_b32 s22, s20, 14")
    a(f"s_add_u32 s22, s22, {WOI}")
    a("v_lshl_add_u32 v21, v1, 4, s22")
    for j in range(4):
        for kk in range(4):
            a(f"buffer_load_dwordx4 v[{24+kk*4}:{27+kk*4}], v20, s[8:11], 0 offen offset:{kk*1024}")
        a("s_waitcnt vmcnt(0)")
        for kk in range(4):
            a(f"ds_write_b128 v21, v[{24+kk*4}:{27+kk*4}] offset:{j*4096 + kk*1024}")
        if j < 3:
            a(f"v_add_u32 v20, {hex(128*1024)}, v20")
        a("s_waitcnt lgkmcnt(0)")
    a(f"""
    v_lshlrev_b32 v5, 3, v3
    v_add_lshl_u32 v5, v5, v18, 4        ; (g*8+(m&7))*16
    v_add_u32 v4, {MEMI}, v5
    s_and_b32 s21, s20, 1
    s_lshl_b32 s21, s21, 1
    v_lshrrev_b32 v6, 1, v3
    v_add_u32 v6, s21, v6
    v_lshlrev_b32 v6, 7, v6
    v_lshl_add_u32 v6, v18, 4, v6
    v_and_b32 v19, 1, v3
    v_lshl_add_u32 v6, v19, 3, v6
    s_lshr_b32 s21, s20, 1
    s_lshl_b32 s21, s21, 9
    v_add_u32 v6, s21, v6
    s_lshl_b32 s21, s20, 14
    s_add_u32 s21, s21, {WOI}
    v_lshl_add_u32 v7, v1, 4, s21
    s_lshl_b32 s21, s20, 10
    v_lshl_add_u32 v9, v1, 4, s21         ; w*1024 + lane*16
    v_add_u32 v8, {hex(M2)}, v9
    v_add_u32 v9, {MEMI}, v9
    s_lshl_b32 s21, s20, 16               ; (4w)*16384
    s_lshl_b32 s22, s2, 9
    s_add_u32 s21, s21, s22
    s_add_u32 s21, s21, {hex(H1)}
    v_add_u32 v10, s21, v5
    s_lshl_b32 s21, s2, 14
    s_lshl_b32 s22, s20, 11
    s_add_u32 s21, s21, s22
    s_add_u32 s21, s21, {hex(H1)}
    v_lshl_add_u32 v11, v1, 4, s21
    v_and_b32 v19, 31, v1
    s_lshl_b32 s21, s20, 9
    s_add_u32 s21, s21, {RED}
    v_lshl_add_u32 v12, v19, 4, s21
    """)
    a(f"""
    s_lshl_b32 s21, s2, 8
    s_lshl_b32 s22, s20, 5
    s_add_u32 s21, s21, s22               ; (h*128+16w)*2
    v_lshlrev_b32 v13, 13, v18
    v_lshl_add_u32 v13, v3, 3, v13
    v_add_u32 v13, s21, v13
    v_add_u32 v13, {hex(KM)}, v13
    """)
    a(f"""
    s_lshl_b32 s22, s21, 3                ; (h*128+16w)*16
    v_lshl_add_u32 v14, v2, 4, s22
    v_and_b32 v19, 1, v3
    v_lshl_add_u32 v14, v19, 3, v14
    v_add_u32 v14, {hex(VMT)}, v14
    """)
    a(f"""
    s_lshr_b32 s21, s20, 2
    s_lshl_b32 s21, s21, 4
    v_add_u32 v15, s21, v2
    v_lshlrev_b32 v15, 14, v15
    s_lshl_b32 s21, s2, 8
    s_and_b32 s22, s20, 3
    s_lshl_b32 s22, s22, 6
    s_add_u32 s21, s21, s22
    s_add_u32 s21, s21, {hex(QK + 8192)}
    v_lshl_add_u32 v15, v3, 4, v15
    v_add_u32 v15, s21, v15
    """)
    a(f"""
    s_lshl_b32 s21, s2, 7
    s_lshl_b32 s22, s20, 4
    s_add_u32 s21, s21, s22
    v_add_u32 v16, s21, v2
    v_lshlrev_b32 v16, 12, v16
    v_lshl_add_u32 v16, v3, 3, v16
    v_add_u32 v16, {hex(VT)}, v16
    """)
    a(f"""
    v_lshrrev_b32 v19, 4, v1
    v_and_b32 v19, 1, v19
    v_lshl_add_u32 v17, v19, 3, v18
    v_lshlrev_b32 v17, 4, v17
    v_lshrrev_b32 v19, 3, v1
    v_and_b32 v19, 1, v19
    v_lshl_add_u32 v17, v19, 3, v17
    s_lshl_b32 s21, s2, 8
    s_add_u32 s21, s21, {hex(M2 + 8192)}
    v_add_u32 v17, s21, v17
    v_cmp_gt_u32 s[40:41], 2, v3
    s_mov_b32 s30, 0                      ; step
    s_mov_b32 s31, 0                      ; s*8192   (M2)
    s_mov_b32 s32, 0                      ; s*524288 (H1)
    s_mov_b32 s33, 0
    s_mov_b32 s34, 0                      ; s*32*16384 (kx)
    s_mov_b32 s35, 0                      ; s*64 (vx)
    """)
    a("buffer_load_dwordx4 v[56:59], v15, s[8:11], s34 offen")
    a("buffer_load_dwordx2 v[60:61], v16, s[8:11], s35 offen")
    a("buffer_load_dwordx2 v[62:63], v16, s[8:11], s35 offen offset:32")
    lstep = a.newlabel("step")
    a.label(lstep)
    lp = a.newlabel("p2")
    lpo = a.newlabel("p2o")
    a("s_mov_b32 s36, 0")
    a.label(lp)
    a(f"""
    buffer_load_dwordx4 v[20:23], v8, s[8:11], s31 offen sc1
    s_add_u32 s36, s36, 1
    s_cmp_ge_u32 s36, {POLL_CAP}
    s_cbranch_scc1 {lpo}
    s_waitcnt vmcnt(0)
    v_max_u32 v24, v20, v21
    v_max3_u32 v24, v24, v22, v23
    v_cmp_eq_u32 vcc, -1, v24
    s_cbranch_vccnz {lp}
    """)
    a.label(lpo)
    a("s_waitcnt vmcnt(0)")
    a("ds_write_b128 v9, v[20:23]")
    a(f"s_lshl_b32 s21, s20, 10")
    a(f"v_lshl_add_u32 v24, v1, 4, s21")
    a(f"ds_write_b128 v24, v[56:59] offset:{KXI}")
    a("s_waitcnt lgkmcnt(0)")
    a("s_barrier")
    for i in range(12):
        a(f"v_mov_b32 v{28+i}, 0")
    a("ds_read_b128 v[20:23], v4")
    for kk in range(16):
        cur = 20 + (kk & 1) * 4
        nxt = 20 + ((kk + 1) & 1) * 4
        if kk < 15:
            a(f"ds_read_b128 v[{nxt}:{nxt+3}], v4 offset:{(kk+1)*512}")
            a("s_waitcnt lgkmcnt(1)")
        else:
            a("s_waitcnt lgkmcnt(0)")
        a(f"v_mfma_f32_16x16x32_bf16 v[28:31], v[{64+kk*4}:{67+kk*4}], v[{cur}:{cur+3}], v[28:31]")
        a(f"v_mfma_f32_16x16x32_bf16 v[32:35], v[{128+kk*4}:{131+kk*4}], v[{cur}:{cur+3}], v[32:35]")
        a(f"v_mfma_f32_16x16x32_bf16 v[36:39], v[{cur}:{cur+3}], v[{192+kk*4}:{195+kk*4}], v[36:39]")
    a("s_nop 7\ns_nop 1")
    a("""
    v_cvt_pk_bf16_f32 v40, v28, v29
    v_cvt_pk_bf16_f32 v41, v30, v31
    v_cvt_pk_bf16_f32 v42, v32, v33
    v_cvt_pk_bf16_f32 v43, v34, v35
    v_cvt_pk_bf16_f32 v18, v36, v37
    v_cvt_pk_bf16_f32 v19, v38, v39
    """)
    a(f"ds_write_b64 v6, v[40:41] offset:{QI}")
    a(f"ds_write_b64 v6, v[42:43] offset:{KI}")
    a("buffer_store_dwordx2 v[42:43], v13, s[8:11], s33 offen")
    a("buffer_store_dwordx2 v[18:19], v14, s[8:11], s33 offen")
    a("s_cmp_eq_u32 s30, 63")
    a(f"s_cbranch_scc1 {lend}")
    a("s_waitcnt lgkmcnt(0)")
    a("s_barrier")
    for kk in range(4):
        a(f"ds_read_b128 v[{20+kk*4}:{23+kk*4}], v5 offset:{QI + kk*512}")
    for i in range(12):
        a(f"v_mov_b32 v{44+i}, 0")
    a(f"v_lshlrev_b32 v0, 4, v1")
    seq = [(0, kk) for kk in range(4)] + [(1, kk) for kk in range(4)] + [(2, kk) for kk in range(4)]
    def rd(i):
        t, kk = seq[i]
        r = 36 + (i & 1) * 4
        if t == 0:
            a(f"ds_read_b128 v[{r}:{r+3}], v5 offset:{KI + kk*512}")
        else:
            a(f"ds_read_b128 v[{r}:{r+3}], v0 offset:{KXI + ((t-1)*4+kk)*1024}")
    rd(0)
    for i in range(12):
        t, kk = seq[i]
        r = 36 + (i & 1) * 4
        if i < 11:
            rd(i + 1)
            a("s_waitcnt lgkmcnt(1)")
        else:
            a("s_waitcnt lgkmcnt(0)")
        a(f"v_mfma_f32_16x16x32_bf16 v[{44+t*4}:{47+t*4}], v[{r}:{r+3}], v[{20+kk*4}:{23+kk*4}], v[{44+t*4}:{47+t*4}]")
    a("s_nop 7\ns_nop 1")
    S = list(range(44, 56))
    round_scale(a, S, 20)
    a("v_mov_b32 v20, 0xff800000")
    for r in range(44, 48):
        a(f"v_cndmask_b32 v{r}, v20, v{r}, s[40:41]")
    softmax_regs(a, S, 21, 22, 23)
    for i in range(6):
        a(f"v_cvt_pk_bf16_f32 v{20+i}, v{44+2*i}, v{45+2*i}")
    for i in range(4):
        a(f"v_mov_b32 v{28+i}, 0")
    a("s_nop 1")
    a("v_mfma_f32_16x16x16_bf16 v[28:31], v[18:19], v[20:21], v[28:31]")
    a("s_nop 7")
    a("v_mfma_f32_16x16x32_bf16 v[28:31], v[60:63], v[22:25], v[28:31]")
    a("s_nop 7\ns_nop 1")
    a("v_cvt_pk_bf16_f32 v32, v28, v29")
    a("v_cvt_pk_bf16_f32 v33, v30, v31")
    a(f"ds_write_b64 v6, v[32:33] offset:{OI}")
    a("s_waitcnt lgkmcnt(0)")
    a("s_barrier")
    for kk in range(4):
        a(f"ds_read_b128 v[{20+kk*4}:{23+kk*4}], v5 offset:{OI + kk*512}")
    a("v_mov_b32 v0, v10")
    for ps in range(2):
        for i in range(8):
            a(f"v_mov_b32 v{44+i}, 0")
        items = [(j, kk) for j in range(2) for kk in range(4)]
        def rdw(i):
            j, kk = items[i]
            r = 36 + (i & 1) * 4
            a(f"ds_read_b128 v[{r}:{r+3}], v7 offset:{(ps*2+j)*4096 + kk*1024}")
        rdw(0)
        for i in range(8):
            j, kk = items[i]
            r = 36 + (i & 1) * 4
            if i < 7:
                rdw(i + 1)
                a("s_waitcnt lgkmcnt(1)")
            else:
                a("s_waitcnt lgkmcnt(0)")
            a(f"v_mfma_f32_16x16x32_bf16 v[{44+j*4}:{47+j*4}], v[{r}:{r+3}], v[{20+kk*4}:{23+kk*4}], v[{44+j*4}:{47+j*4}]")
        a("s_nop 7\ns_nop 1")
        for i in range(8):
            a(f"v_min_u32 v{44+i}, -2, v{44+i}")
        for j in range(2):
            a(f"buffer_store_dwordx4 v[{44+j*4}:{47+j*4}], v0, s[8:11], s32 offen sc1")
            a("v_add_u32 v0, 0x4000, v0")
        a("s_nop 1")
    a("s_add_u32 s34, s34, 0x80000")
    a("s_add_u32 s35, s35, 64")
    a("buffer_load_dwordx4 v[56:59], v15, s[8:11], s34 offen")
    a("buffer_load_dwordx2 v[60:61], v16, s[8:11], s35 offen")
    a("buffer_load_dwordx2 v[62:63], v16, s[8:11], s35 offen offset:32")
    lp = a.newlabel("p1")
    lpo = a.newlabel("p1o")
    a("s_mov_b32 s36, 0")
    a.label(lp)
    a(f"""
    buffer_load_dwordx4 v[20:23], v11, s[8:11], s32 offen sc1
    buffer_load_dwordx4 v[24:27], v11, s[8:11], s32 offen offset:1024 sc1
    s_add_u32 s36, s36, 1
    s_cmp_ge_u32 s36, {POLL_CAP}
    s_cbranch_scc1 {lpo}
    s_waitcnt vmcnt(0)
    v_max_u32 v28, v20, v21
    v_max3_u32 v28, v28, v22, v23
    v_max3_u32 v28, v28, v24, v25
    v_max3_u32 v28, v28, v26, v27
    v_cmp_eq_u32 vcc, -1, v28
    s_cbranch_vccnz {lp}
    """)
    a.label(lpo)
    a("s_waitcnt vmcnt(0)")
    for i in range(4):
        a(f"v_add_f32 v{20+i}, v{20+i}, v{24+i}")
    for i in range(4):
        a(f"v_mov_b32 v{24+i}, v{20+i}")
    a("s_nop 1")
    for i in range(4):
        a(f"v_permlane32_swap_b32 v{20+i}, v{24+i}")
    a("s_nop 1")
    for i in range(4):
        a(f"v_add_f32 v{20+i}, v{20+i}, v{24+i}")
    a("ds_write_b128 v12, v[20:23]")
    a("s_waitcnt lgkmcnt(0)")
    a("s_barrier")
    lnw = a.newlabel("nw")
    a("s_cmp_lg_u32 s20, 0")
    a(f"s_cbranch_scc1 {lnw}")
    a("v_lshlrev_b32 v0, 4, v1")
    for i in range(4):
        a(f"ds_read_b128 v[{20+i*4}:{23+i*4}], v0 offset:{RED + i*1024}")
    a("s_waitcnt lgkmcnt(0)")
    for i in range(4):
        a(f"v_add_f32 v{20+i}, v{20+i}, v{24+i}")
        a(f"v_add_f32 v{28+i}, v{28+i}, v{32+i}")
    for i in range(4):
        a(f"v_add_f32 v{20+i}, v{20+i}, v{28+i}")
    for i in range(4):
        a(f"v_mov_b32 v{24+i}, v{20+i}")
    a("s_nop 1")
    for i in range(4):
        a(f"v_permlane32_swap_b32 v{20+i}, v{24+i}")
    a("s_nop 1")
    for i in range(4):
        a(f"v_add_f32 v{20+i}, v{20+i}, v{24+i}")
    a("v_cvt_pk_bf16_f32 v24, v20, v21")
    a("v_cvt_pk_bf16_f32 v25, v22, v23")
    a("v_min_u32 v24, -2, v24")
    a("v_min_u32 v25, -2, v25")
    a("buffer_store_dwordx2 v[24:25], v17, s[8:11], s31 offen sc1")
    a.label(lnw)
    a(f"""
    s_add_u32 s30, s30, 1
    s_add_u32 s31, s31, 8192
    s_add_u32 s32, s32, 0x80000
    s_add_u32 s33, s33, 0x10000
    s_branch {lstep}
    """)
    a.label(lend)
    a("s_endpgm")
    return kernel_desc(name, 256)

def gen_attn(a):
    name = "attn_kernel"
    kernel_header(a, name)
    lend = a.newlabel("aend")
    a(f"""
    s_cmp_ge_u32 s2, 512
    s_cbranch_scc1 {lend}
    s_load_dwordx2 s[4:5], s[0:1], {KA_WS}
    v_and_b32 v1, 63, v0
    v_lshrrev_b32 v2, 6, v0
    s_nop 0
    v_readfirstlane_b32 s20, v2
    s_waitcnt lgkmcnt(0)
    """)
    srd(a, 8, 4, WS_BYTES)
    a(f"""
    s_lshl_b32 s21, s2, 2
    s_add_u32 s21, s21, s20
    s_and_b32 s22, s21, 31        ; h
    s_lshr_b32 s23, s21, 5        ; s
    v_and_b32 v2, 15, v1
    v_lshrrev_b32 v3, 4, v1
    v_and_b32 v4, 7, v1
    s_lshl_b32 s24, s23, 19
    s_lshl_b32 s25, s22, 8
    s_add_u32 s24, s24, s25
    s_add_u32 s24, s24, {hex(QK)}
    v_lshlrev_b32 v5, 14, v2
    v_lshl_add_u32 v5, v3, 4, v5
    v_add_u32 v5, s24, v5
    v_add_u32 v6, {hex(16*16384)}, v5
    s_lshl_b32 s24, s23, 16
    s_add_u32 s24, s24, s25
    s_add_u32 s24, s24, {hex(KM)}
    v_lshlrev_b32 v7, 13, v4
    v_lshl_add_u32 v7, v3, 4, v7
    v_add_u32 v7, s24, v7
    """)
    for tt in range(2):
        for kk in range(4):
            r = 16 + (tt*4+kk)*4
            a(f"buffer_load_dwordx4 v[{r}:{r+3}], v{5+tt}, s[8:11], 0 offen offset:{kk*64}")
    for kk in range(4):
        r = 48 + kk*4
        a(f"buffer_load_dwordx4 v[{r}:{r+3}], v7, s[8:11], 0 offen offset:{kk*64}")
    a("v_add_u32 v8, 0x2000, v5\nv_add_u32 v9, 0x2000, v6")
    for t in range(1, 3):
        for kk in range(4):
            r = 48 + (t*4+kk)*4
            a(f"buffer_load_dwordx4 v[{r}:{r+3}], v{7+t}, s[8:11], 0 offen offset:{kk*64}")
    ACC = 96
    for i in range(24):
        a(f"v_mov_b32 v{ACC+i}, 0")
    a("s_waitcnt vmcnt(0)")
    for t in range(3):
        for tt in range(2):
            for kk in range(4):
                c = ACC + (t*2+tt)*4
                a(f"v_mfma_f32_16x16x32_bf16 v[{c}:{c+3}], v[{48+(t*4+kk)*4}:{51+(t*4+kk)*4}], v[{16+(tt*4+kk)*4}:{19+(tt*4+kk)*4}], v[{c}:{c+3}]")
    a("s_nop 7\ns_nop 1")
    a(f"""
    s_lshl_b32 s24, s23, 16
    s_lshl_b32 s25, s22, 11
    s_add_u32 s24, s24, s25
    s_add_u32 s24, s24, {hex(VMT)}
    v_and_b32 v10, 1, v3
    v_lshlrev_b32 v10, 3, v10
    v_lshl_add_u32 v10, v2, 4, v10
    v_add_u32 v10, s24, v10
    s_lshl_b32 s24, s22, 19
    s_lshl_b32 s25, s23, 6
    s_add_u32 s24, s24, s25
    s_add_u32 s24, s24, {hex(VT)}
    v_lshlrev_b32 v11, 12, v2
    v_lshl_add_u32 v11, v3, 3, v11
    v_add_u32 v11, s24, v11
    """)
    for et in range(8):
        r = 16 + et*6
        a(f"buffer_load_dwordx2 v[{r}:{r+1}], v10, s[8:11], 0 offen offset:{et*256}")
        a(f"buffer_load_dwordx2 v[{r+2}:{r+3}], v11, s[8:11], 0 offen")
        a(f"buffer_load_dwordx2 v[{r+4}:{r+5}], v11, s[8:11], 0 offen offset:32")
        if et < 7:
            a("v_add_u32 v11, 0x10000, v11")
    a("v_lshlrev_b32 v12, 2, v3")
    a("v_sub_u32 v12, v2, v12")
    a("v_cmp_gt_u32 s[40:41], 2, v3")
    a("v_mov_b32 v13, 0xff800000")
    P = 64
    for tt in range(2):
        S = [ACC + (t*2+tt)*4 + r for t in range(3) for r in range(4)]
        round_scale(a, S, 14)
        for r in range(4):
            a(f"v_cndmask_b32 v{S[r]}, v13, v{S[r]}, s[40:41]")
        for t in range(1, 3):
            for r in range(4):
                cst = (t-1)*16 + r - tt*16
                a(f"v_cmp_le_i32 vcc, {cst}, v12")
                a("s_nop 1")
                a(f"v_cndmask_b32 v{S[t*4+r]}, v13, v{S[t*4+r]}, vcc")
        softmax_regs(a, S, 14, 15, 90)
        for i in range(6):
            a(f"v_cvt_pk_bf16_f32 v{P+tt*6+i}, v{S[2*i]}, v{S[2*i+1]}")
    a(f"""
    ; OB + (s*32 + (l&15))*8192 + h*256 + g*8
    s_lshl_b32 s24, s23, 18
    s_lshl_b32 s25, s22, 8
    s_add_u32 s24, s24, s25
    s_add_u32 s24, s24, {hex(OB)}
    v_lshlrev_b32 v12, 13, v2
    v_lshl_add_u32 v12, v3, 3, v12
    v_add_u32 v12, s24, v12
    v_add_u32 v13, {hex(16*8192)}, v12
    s_waitcnt vmcnt(0)
    """)
    OA = 80
    for et in range(8):
        r = 16 + et*6
        for tt in range(2):
            c = OA + tt*4
            for i in range(4):
                a(f"v_mov_b32 v{c+i}, 0")
            a("s_nop 1")
            a(f"v_mfma_f32_16x16x16_bf16 v[{c}:{c+3}], v[{r}:{r+1}], v[{P+tt*6}:{P+tt*6+1}], v[{c}:{c+3}]")
            a("s_nop 7")
            a(f"v_mfma_f32_16x16x32_bf16 v[{c}:{c+3}], v[{r+2}:{r+5}], v[{P+tt*6+2}:{P+tt*6+5}], v[{c}:{c+3}]")
        a("s_nop 7\ns_nop 1")
        for tt in range(2):
            c = OA + tt*4
            a(f"v_cvt_pk_bf16_f32 v{88+tt*2}, v{c}, v{c+1}")
            a(f"v_cvt_pk_bf16_f32 v{89+tt*2}, v{c+2}, v{c+3}")
            a(f"buffer_store_dwordx2 v[{88+tt*2}:{89+tt*2}], v{12+tt}, s[8:11], 0 offen offset:{et*32}")
        a("s_nop 1")
    a.label(lend)
    a("s_endpgm")
    return kernel_desc(name, 120)

def gen_splitk(a, name, A_off, lda, W_off, kk_per_wave, w_nt_stride, w_kk_stride, res_from_x, out_to_dout):
    kernel_header(a, name)
    lend = a.newlabel("send")
    a(f"""
    s_cmp_ge_u32 s2, 256
    s_cbranch_scc1 {lend}
    s_load_dwordx2 s[4:5], s[0:1], {KA_WS}
    s_load_dwordx2 s[6:7], s[0:1], {KA_X if res_from_x else KA_OUT}
    v_and_b32 v1, 63, v0
    v_lshrrev_b32 v2, 6, v0
    s_nop 0
    v_readfirstlane_b32 s20, v2
    s_waitcnt lgkmcnt(0)
    """)
    srd(a, 8, 4, WS_BYTES)
    srd(a, 12, 6, 2 * MB)
    a(f"""
    s_and_b32 s21, s2, 31
    s_lshl_b32 s21, s21, 6            ; m0
    s_lshr_b32 s22, s2, 5
    s_lshl_b32 s22, s22, 2            ; nt0
    v_and_b32 v2, 15, v1
    v_lshrrev_b32 v3, 4, v1
    v_add_u32 v4, s21, v2
    s_mov_b32 s23, {lda}
    v_mul_lo_u32 v4, v4, s23
    v_lshl_add_u32 v4, v3, 4, v4
    v_add_u32 v4, {hex(A_off)}, v4
    """)
    for mt in range(4):
        a(f"v_add_u32 v{8+mt}, {mt*16*lda}, v4")
    a(f"s_mul_i32 s25, s22, {w_nt_stride}")
    a(f"s_add_u32 s25, s25, {hex(W_off)}")
    a("v_lshl_add_u32 v4, v1, 4, s25")
    for nt in range(4):
        a(f"v_add_u32 v{12+nt}, {nt*w_nt_stride}, v4")
    a(f"s_mul_i32 s26, s20, {kk_per_wave*64}")
    a(f"s_mul_i32 s27, s20, {kk_per_wave*w_kk_stride}")
    XF, WF, ACC = 16, 48, 80
    gemm_loop(a, 4, 4, kk_per_wave, 8, True, [8,9,10,11], [12,13,14,15], XF, WF, ACC, 26, 27, 28, wstride=w_kk_stride)
    a("s_lshl_b32 s25, s20, 14")
    a("v_lshl_add_u32 v4, v1, 4, s25")
    for q in range(16):
        a(f"ds_write_b128 v4, v[{ACC+q*4}:{ACC+q*4+3}] offset:{q*1024}")
    a("s_waitcnt lgkmcnt(0)")
    a("s_barrier")
    a("s_lshl_b32 s25, s20, 12")
    a("v_lshl_add_u32 v4, v1, 4, s25")
    for v in range(4):
        for i in range(4):
            r = 16 + (v*4+i)*4
            a(f"ds_read_b128 v[{r}:{r+3}], v4 offset:{v*16384 + i*1024}")
    a(f"""
    v_add_u32 v5, s21, v2
    v_lshlrev_b32 v5, 10, v5
    s_add_u32 s25, s22, s20
    s_lshl_b32 s25, s25, 5
    v_lshl_add_u32 v5, v3, 3, v5
    v_add_u32 v5, s25, v5
    v_add_u32 v6, {hex(HB)}, v5
    """)
    for mt in range(4):
        if res_from_x:
            a(f"v_add_u32 v7, {mt*16*1024}, v5")
            a(f"buffer_load_dwordx2 v[{80+mt*2}:{81+mt*2}], v7, s[12:15], 0 offen")
        else:
            a(f"v_add_u32 v7, {mt*16*1024}, v6")
            a(f"buffer_load_dwordx2 v[{80+mt*2}:{81+mt*2}], v7, s[8:11], 0 offen")
    a("s_waitcnt vmcnt(0) lgkmcnt(0)")
    for mt in range(4):
        for i in range(4):
            r = 16 + mt*4 + i
            a(f"v_add_f32 v{r}, v{r}, v{r+16}")
            a(f"v_add_f32 v{r+32}, v{r+32}, v{r+48}")
            a(f"v_add_f32 v{r}, v{r}, v{r+32}")
        r = 16 + mt*4
        a(f"v_cvt_pk_bf16_f32 v90, v{r}, v{r+1}")
        a(f"v_cvt_pk_bf16_f32 v91, v{r+2}, v{r+3}")
        for j in range(2):
            a(f"v_lshlrev_b32 v92, 16, v{90+j}")
            a(f"v_and_b32 v93, 0xffff0000, v{90+j}")
            a(f"v_lshlrev_b32 v94, 16, v{80+mt*2+j}")
            a(f"v_and_b32 v95, 0xffff0000, v{80+mt*2+j}")
            a("v_add_f32 v92, v92, v94")
            a("v_add_f32 v93, v93, v95")
            a(f"v_cvt_pk_bf16_f32 v{96+mt*2+j}, v92, v93")
        if out_to_dout:
            a(f"v_add_u32 v7, {mt*16*1024}, v5")
            a(f"buffer_store_dwordx2 v[{96+mt*2}:{97+mt*2}], v7, s[12:15], 0 offen")
        else:
            a(f"v_add_u32 v7, {mt*16*1024}, v6")
            a(f"buffer_store_dwordx2 v[{96+mt*2}:{97+mt*2}], v7, s[8:11], 0 offen")
    a.label(lend)
    a("s_endpgm")
    return kernel_desc(name, 144)

def gen_ln2(a):
    name = "ln2_kernel"
    kernel_header(a, name)
    lend = a.newlabel("lend")
    a(f"""
    s_cmp_ge_u32 s2, 512
    s_cbranch_scc1 {lend}
    s_load_dwordx2 s[4:5], s[0:1], {KA_WS}
    v_and_b32 v1, 63, v0
    v_lshrrev_b32 v4, 6, v0
    s_waitcnt lgkmcnt(0)
    """)
    srd(a, 8, 4, WS_BYTES)
    a("s_lshl_b32 s3, s2, 2")
    a("v_add_u32 v4, s3, v4")
    emit_ln_row(a, 8, HB, 8, HN, 4)
    a.label(lend)
    a("s_endpgm")
    return kernel_desc(name, 48)

def gen_ffn1(a):
    name = "ffn1_kernel"
    kernel_header(a, name)
    lend = a.newlabel("fend")
    a(f"""
    s_cmp_ge_u32 s2, 448
    s_cbranch_scc1 {lend}
    s_load_dwordx2 s[4:5], s[0:1], {KA_WS}
    v_and_b32 v1, 63, v0
    v_lshrrev_b32 v2, 6, v0
    s_nop 0
    v_readfirstlane_b32 s20, v2
    s_waitcnt lgkmcnt(0)
    """)
    srd(a, 8, 4, WS_BYTES)
    a(f"""
    s_lshl_b32 s21, s2, 2
    s_add_u32 s21, s21, s20
    s_lshr_b32 s22, s21, 5            ; fb (0..55)
    s_and_b32 s21, s21, 31
    s_lshl_b32 s21, s21, 6            ; m0
    v_and_b32 v2, 15, v1
    v_lshrrev_b32 v3, 4, v1
    v_add_u32 v4, s21, v2
    v_lshlrev_b32 v4, 10, v4
    v_lshl_add_u32 v4, v3, 4, v4
    v_add_u32 v4, {hex(HN)}, v4
    """)
    for mt in range(4):
        a(f"v_add_u32 v{8+mt}, {mt*16*1024}, v4")
    a("s_lshl_b32 s25, s22, 15")
    a("v_lshl_add_u32 v4, v1, 4, s25")
    a(f"v_add_u32 v12, {hex(WG)}, v4")
    a(f"v_add_u32 v13, {hex(WG+16384)}, v4")
    a(f"v_add_u32 v14, {hex(WU)}, v4")
    a(f"v_add_u32 v15, {hex(WU+16384)}, v4")
    a("s_mov_b32 s26, 0\ns_mov_b32 s27, 0")
    XF, WF, ACC = 16, 48, 80
    gemm_loop(a, 4, 4, 16, 8, True, [8,9,10,11], [12,13,14,15], XF, WF, ACC, 26, 27, 28)
    a(f"""
    v_add_u32 v4, s21, v2
    s_mov_b32 s25, 3584
    v_mul_lo_u32 v4, v4, s25
    s_lshl_b32 s25, s22, 6
    v_lshl_add_u32 v4, v3, 3, v4
    v_add_u32 v4, s25, v4
    v_add_u32 v4, {hex(HH)}, v4
    """)
    for mt in range(4):
        for nt in range(2):
            cg = ACC + (nt*4+mt)*4
            cu = ACC + ((nt+2)*4+mt)*4
            o = 16 + nt*2
            for j in range(2):
                a(f"v_cvt_pk_bf16_f32 v20, v{cg+2*j}, v{cg+2*j+1}")
                a(f"v_cvt_pk_bf16_f32 v21, v{cu+2*j}, v{cu+2*j+1}")
                a("v_lshlrev_b32 v22, 16, v20")
                a("v_and_b32 v23, 0xffff0000, v20")
                a("v_lshlrev_b32 v24, 16, v21")
                a("v_and_b32 v25, 0xffff0000, v21")
                a("v_mul_f32 v22, v22, v24")
                a("v_mul_f32 v23, v23, v25")
                a(f"v_cvt_pk_bf16_f32 v{o+j}, v22, v23")
            a(f"buffer_store_dwordx2 v[{o}:{o+1}], v4, s[8:11], 0 offen offset:{nt*32}")
            a("s_nop 1")
        if mt < 3:
            a(f"v_add_u32 v4, {16*3584}, v4")
    a.label(lend)
    a("s_endpgm")
    return kernel_desc(name, 144)

def add(a, descs, launches):
    descs.append(gen_rec(a));  launches.append(("rec_kernel", 32, 512, REC_LDS))
    descs.append(gen_attn(a)); launches.append(("attn_kernel", 512, 256, 0))
    descs.append(gen_splitk(a, "wo_kernel", OB, 8192, WO, 32, 128*1024, 1024, True, False))
    launches.append(("wo_kernel", 256, 256, 65536))
    descs.append(gen_ln2(a));  launches.append(("ln2_kernel", 512, 256, 0))
    descs.append(gen_ffn1(a)); launches.append(("ffn1_kernel", 448, 256, 0))
    descs.append(gen_splitk(a, "ffn2_kernel", HH, 3584, WD, 14, 1024, 32*1024, False, True))
    launches.append(("ffn2_kernel", 256, 256, 65536))
```

```python
import sys

NAME = "sequential_preLN__memory_aug_recurrent_mem_tr__glu_gated_bilinear__prompt"

MB = 1 << 20
XN   = 0
WQKV = 2 * MB
WO   = 14 * MB
WG   = 18 * MB
WU   = 20 * MB
WD   = 22 * MB
QK   = 24 * MB
VT   = 56 * MB
KM   = 72 * MB
VMT  = 76 * MB
OB   = 80 * MB
HB   = 96 * MB
HN   = 98 * MB
HH   = 100 * MB
M2   = 112 * MB
H1   = 128 * MB
WS_BYTES = 256 * MB

KA_X, KA_MEM0, KA_WQ, KA_WK, KA_WV, KA_WO, KA_SEG, KA_BX, KA_WG, KA_WU, KA_WD, KA_OUT, KA_DBG, KA_WS = [8*i for i in range(14)]

class Asm:
    def __init__(self):
        self.lines = []
        self.lbl = 0
    def __call__(self, s):
        for ln in s.strip("\n").split("\n"):
            self.lines.append("    " + ln.strip())
    def label(self, s):
        self.lines.append(s + ":")
    def newlabel(self, p="L"):
        self.lbl += 1
        return f".{p}{self.lbl}"
    def text(self):
        return "\n".join(self.lines) + "\n"

def srd(a, d, base_lo, nbytes):
    a(f"s_mov_b32 s{d}, s{base_lo}")
    a(f"s_and_b32 s{d+1}, s{base_lo+1}, 0xffff")
    a(f"s_mov_b32 s{d+2}, {hex(nbytes)}")
    a(f"s_mov_b32 s{d+3}, 0x00020000")

def kernel_header(a, name):
    a.lines.append(f".globl {name}")
    a.lines.append(".p2align 8")
    a.lines.append(f".type {name},@function")
    a.label(name)

def kernel_desc(name, vgpr, sgpr=102):
    acc = (vgpr + 3) // 4 * 4
    return f""".p2align 6
.amdhsa_kernel {name}
  .amdhsa_next_free_vgpr {vgpr}
  .amdhsa_next_free_sgpr {sgpr}
  .amdhsa_accum_offset {acc}
  .amdhsa_group_segment_fixed_size 0
  .amdhsa_kernarg_size 112
  .amdhsa_user_sgpr_count 2
  .amdhsa_user_sgpr_kernarg_segment_ptr 1
  .amdhsa_system_sgpr_workgroup_id_x 1
.end_amdhsa_kernel
"""

def allreduce16(a, op, r, t):
    for sh in (8, 4, 2, 1):
        a(f"s_nop 1")
        a(f"{op}_dpp v{t}, v{r}, v{r} row_ror:{sh} row_mask:0xf bank_mask:0xf")
        a(f"s_nop 1")
        a(f"v_mov_b32 v{r}, v{t}")

def allreduce_groups(a, op, r, t):
    a(f"v_mov_b32 v{t}, v{r}")
    a("s_nop 1")
    a(f"v_permlane16_swap_b32 v{r}, v{t}")
    a("s_nop 1")
    a(f"{op} v{r}, v{r}, v{t}")
    a(f"v_mov_b32 v{t}, v{r}")
    a("s_nop 1")
    a(f"v_permlane32_swap_b32 v{r}, v{t}")
    a("s_nop 1")
    a(f"{op} v{r}, v{r}, v{t}")

def emit_ln_row(a, s_src, src_off, s_dst, dst_off, vrow):
    a(f"""
    v_lshlrev_b32 v2, 10, v{vrow}
    v_lshl_add_u32 v2, v1, 4, v2
    v_add_u32 v3, {hex(src_off)}, v2
    buffer_load_dwordx4 v[8:11], v3, s[{s_src}:{s_src+3}], 0 offen
    s_waitcnt vmcnt(0)
    """)
    for i in range(4):
        a(f"v_lshlrev_b32 v{12+2*i}, 16, v{8+i}")
        a(f"v_and_b32 v{13+2*i}, 0xffff0000, v{8+i}")
    a("v_add_f32 v20, v12, v13")
    for i in range(2, 8):
        a(f"v_add_f32 v20, v20, v{12+i}")
    allreduce16(a, "v_add_f32", 20, 21)
    allreduce_groups(a, "v_add_f32", 20, 21)
    a("v_mul_f32 v20, 0x3b000000, v20")
    for i in range(8):
        a(f"v_sub_f32 v{22+i}, v{12+i}, v20")
    a("v_mul_f32 v30, v22, v22")
    for i in range(1, 8):
        a(f"v_fmac_f32 v30, v{22+i}, v{22+i}")
    allreduce16(a, "v_add_f32", 30, 21)
    allreduce_groups(a, "v_add_f32", 30, 21)
    a("v_mul_f32 v30, 0x3b000000, v30")
    a("v_cvt_pk_bf16_f32 v31, v20, v30")
    a("v_lshlrev_b32 v20, 16, v31")
    a("v_and_b32 v30, 0xffff0000, v31")
    a("v_add_f32 v30, 0x3727c5ac, v30")
    a("v_cvt_pk_bf16_f32 v31, v30, v30")
    a("v_and_b32 v30, 0xffff0000, v31")
    a("v_sqrt_f32 v30, v30")
    a("s_nop 0")
    a("v_cvt_pk_bf16_f32 v31, v30, v30")
    a("v_and_b32 v30, 0xffff0000, v31")
    a("v_rcp_f32 v30, v30")
    a("s_nop 0")
    for i in range(8):
        a(f"v_sub_f32 v{22+i}, v{12+i}, v20")
    for i in range(4):
        a(f"v_cvt_pk_bf16_f32 v{8+i}, v{22+2*i}, v{23+2*i}")
    for i in range(4):
        a(f"v_lshlrev_b32 v{12+2*i}, 16, v{8+i}")
        a(f"v_and_b32 v{13+2*i}, 0xffff0000, v{8+i}")
    for i in range(8):
        a(f"v_mul_f32 v{12+i}, v{12+i}, v30")
    for i in range(4):
        a(f"v_cvt_pk_bf16_f32 v{8+i}, v{12+2*i}, v{13+2*i}")
    a(f"v_add_u32 v3, {hex(dst_off)}, v2")
    a(f"buffer_store_dwordx4 v[8:11], v3, s[{s_dst}:{s_dst+3}], 0 offen")

N_LN = 512
REPACK = [
    (KA_WQ, 512, 4096, WQKV + 0 * 4 * MB, 'nk'),
    (KA_WK, 512, 4096, WQKV + 1 * 4 * MB, 'nk'),
    (KA_WV, 512, 4096, WQKV + 2 * 4 * MB, 'nk'),
    (KA_WO, 4096, 512, WO, 'nk'),
    (KA_WG, 512, 1792, WG, 'nk'),
    (KA_WU, 512, 1792, WU, 'nk'),
    (KA_WD, 1792, 512, WD, 'kn'),
]
FILL_BYTES = 32 * MB + 64 * 8192
N_FILL = (32 * MB) // (256 * 64) + (64 * 8192) // (256 * 64)

def prep_grid():
    return N_LN + sum(K * N // 8 // 256 for _, K, N, _, _ in REPACK) + N_FILL + 2

def gen_prep(a):
    name = "prep_kernel"
    kernel_header(a, name)
    a(f"""
    s_load_dwordx2 s[4:5], s[0:1], {KA_WS}
    s_load_dwordx2 s[6:7], s[0:1], {KA_X}
    v_and_b32 v1, 63, v0
    v_lshrrev_b32 v4, 6, v0
    s_waitcnt lgkmcnt(0)
    """)
    srd(a, 8, 4, WS_BYTES)
    srd(a, 12, 6, 2 * MB)
    lnext = a.newlabel()
    a(f"s_cmp_ge_u32 s2, {N_LN}")
    a(f"s_cbranch_scc1 {lnext}")
    a("s_lshl_b32 s3, s2, 2")
    a("v_add_u32 v4, s3, v4")
    emit_ln_row(a, 12, 0, 8, XN, 4)
    a("s_endpgm")
    a.label(lnext)
    base = N_LN
    for (ka, K, N, dst, order) in REPACK:
        nwg = K * N // 8 // 256
        lnext = a.newlabel()
        a(f"s_cmp_ge_u32 s2, {base + nwg}")
        a(f"s_cbranch_scc1 {lnext}")
        a(f"s_load_dwordx2 s[6:7], s[0:1], {ka}")
        a(f"s_sub_u32 s3, s2, {base}")
        a("s_lshl_b32 s3, s3, 8")
        a("v_add_u32 v2, s3, v0")
        a("s_waitcnt lgkmcnt(0)")
        srd(a, 16, 6, K * N * 2)
        KK, NT = K // 32, N // 16
        a("v_lshrrev_b32 v3, 6, v2")
        if order == 'nk':
            sh = KK.bit_length() - 1
            assert 1 << sh == KK
            a(f"v_and_b32 v5, {KK-1}, v3")
            a(f"v_lshrrev_b32 v6, {sh}, v3")
        else:
            sh = NT.bit_length() - 1
            assert 1 << sh == NT
            a(f"v_and_b32 v6, {NT-1}, v3")
            a(f"v_lshrrev_b32 v5, {sh}, v3")
        a("v_and_b32 v7, 15, v1")
        a("v_lshl_add_u32 v6, v6, 4, v7")
        a("v_lshrrev_b32 v7, 4, v1")
        a("v_lshlrev_b32 v7, 3, v7")
        a("v_lshl_add_u32 v5, v5, 5, v7")
        a(f"s_mov_b32 s3, {N*2}")
        a("v_mul_lo_u32 v5, v5, s3")
        a("v_lshl_add_u32 v5, v6, 1, v5")
        for i in range(8):
            a(f"buffer_load_ushort v{8+i}, v5, s[16:19], 0 offen")
            if i < 7:
                a(f"v_add_u32 v5, {N*2}, v5")
        a("s_waitcnt vmcnt(0)")
        for i in range(4):
            a(f"v_lshl_or_b32 v{16+i}, v{9+2*i}, 16, v{8+2*i}")
        a("v_lshlrev_b32 v2, 4, v2")
        a(f"v_add_u32 v2, {hex(dst)}, v2")
        a("buffer_store_dwordx4 v[16:19], v2, s[8:11], 0 offen")
        a("s_endpgm")
        a.label(lnext)
        base += nwg
    lnext = a.newlabel()
    a(f"s_cmp_ge_u32 s2, {base + N_FILL}")
    a(f"s_cbranch_scc1 {lnext}")
    a(f"s_sub_u32 s3, s2, {base}")
    nh1 = (32 * MB) // (256 * 64)
    a("s_lshl_b32 s3, s3, 14")
    a(f"s_cmp_ge_u32 s3, {hex(32*MB)}")
    a(f"s_mov_b32 s17, {hex(H1)}")
    a(f"s_cselect_b32 s16, {hex(M2 + 8192 - 32*MB)}, s17")
    a("s_add_u32 s3, s3, s16")
    a("v_lshl_add_u32 v2, v0, 4, s3")
    a("v_mov_b32 v8, -1\nv_mov_b32 v9, -1\nv_mov_b32 v10, -1\nv_mov_b32 v11, -1")
    for i in range(4):
        a(f"buffer_store_dwordx4 v[8:11], v2, s[8:11], 0 offen offset:0")
        if i < 3:
            a("v_add_u32 v2, 0x1000, v2")
    a("s_endpgm")
    a.label(lnext)
    base += N_FILL
    lend = a.newlabel()
    a(f"s_cmp_ge_u32 s2, {base + 2}")
    a(f"s_cbranch_scc1 {lend}")
    a(f"s_load_dwordx2 s[6:7], s[0:1], {KA_MEM0}")
    a(f"s_sub_u32 s3, s2, {base}")
    a("s_lshl_b32 s3, s3, 8")
    a("v_add_u32 v2, s3, v0")
    a("s_waitcnt lgkmcnt(0)")
    srd(a, 16, 6, 8192)
    a("v_and_b32 v3, 7, v2")
    a("v_lshrrev_b32 v5, 3, v2")
    a("v_lshlrev_b32 v3, 10, v3")
    a("v_lshl_add_u32 v3, v5, 4, v3")
    a("buffer_load_dwordx4 v[8:11], v3, s[16:19], 0 offen")
    a("v_lshlrev_b32 v2, 4, v2")
    a(f"v_add_u32 v2, {hex(M2)}, v2")
    a("s_waitcnt vmcnt(0)")
    for i in range(4):
        a(f"v_min_u32 v{8+i}, -2, v{8+i}")
    a("buffer_store_dwordx4 v[8:11], v2, s[8:11], 0 offen")
    a.label(lend)
    a("s_endpgm")
    return kernel_desc(name, 48)

def gemm_loop(a, MT, NTL, KKN, s_ws, transposed, vX, vW, XF, WF, ACC, sKX, sKW, sCnt, wstride=1024, nW=1):
    nX, nWt = MT, NTL
    def loads(st):
        for nt in range(nWt):
            r = WF + (st * nWt + nt) * 4
            a(f"buffer_load_dwordx4 v[{r}:{r+3}], v{vW[nt]}, s[{s_ws}:{s_ws+3}], s{sKW} offen")
        for mt in range(nX):
            r = XF + (st * nX + mt) * 4
            a(f"buffer_load_dwordx4 v[{r}:{r+3}], v{vX[mt]}, s[{s_ws}:{s_ws+3}], s{sKX} offen")
        a(f"s_add_u32 s{sKX}, s{sKX}, 64")
        a(f"s_add_u32 s{sKW}, s{sKW}, {wstride}")
    def mfmas(st):
        for nt in range(nWt):
            for mt in range(nX):
                c = ACC + (nt * nX + mt) * 4
                w = WF + (st * nWt + nt) * 4
                x = XF + (st * nX + mt) * 4
                if transposed:
                    a(f"v_mfma_f32_16x16x32_bf16 v[{c}:{c+3}], v[{w}:{w+3}], v[{x}:{x+3}], v[{c}:{c+3}]")
                else:
                    a(f"v_mfma_f32_16x16x32_bf16 v[{c}:{c+3}], v[{x}:{x+3}], v[{w}:{w+3}], v[{c}:{c+3}]")
    for i in range(nWt * nX * 4):
        a(f"v_mov_b32 v{ACC+i}, 0")
    loads(0)
    a(f"s_mov_b32 s{sCnt}, {KKN//2}")
    lp = a.newlabel("gl")
    a.label(lp)
    loads(1)
    a(f"s_waitcnt vmcnt({nX+nWt})")
    mfmas(0)
    loads(0)
    a(f"s_waitcnt vmcnt({nX+nWt})")
    mfmas(1)
    a(f"s_sub_u32 s{sCnt}, s{sCnt}, 1")
    a(f"s_cmp_lg_u32 s{sCnt}, 0")
    a(f"s_cbranch_scc1 {lp}")
    a("s_waitcnt vmcnt(0)")
    a("s_nop 7\ns_nop 7")

def gen_gemm1(a):
    name = "gemm1_kernel"
    kernel_header(a, name)
    lend = a.newlabel()
    a(f"""
    s_cmp_ge_u32 s2, 1536
    s_cbranch_scc1 {lend}
    s_load_dwordx2 s[4:5], s[0:1], {KA_WS}
    v_and_b32 v1, 63, v0
    v_lshrrev_b32 v2, 6, v0
    s_nop 0
    v_readfirstlane_b32 s20, v2
    s_waitcnt lgkmcnt(0)
    """)
    srd(a, 8, 4, WS_BYTES)
    a("""
    s_and_b32 s21, s2, 15
    s_lshr_b32 s22, s2, 4
    s_and_b32 s23, s20, 1
    s_lshr_b32 s24, s20, 1
    s_lshl_b32 s21, s21, 7
    s_lshl_b32 s23, s23, 6
    s_add_u32 s21, s21, s23            ; m0
    s_lshl_b32 s22, s22, 3
    s_lshl_b32 s24, s24, 2
    s_add_u32 s22, s22, s24
    v_and_b32 v2, 15, v1
    v_lshrrev_b32 v3, 4, v1
    v_add_u32 v4, s21, v2
    v_lshlrev_b32 v4, 10, v4
    v_lshl_add_u32 v4, v3, 4, v4
    """)
    a(f"v_add_u32 v4, {hex(XN)}, v4")
    for mt in range(4):
        a(f"v_add_u32 v{8+mt}, {mt*16*1024}, v4")
    a("s_lshl_b32 s25, s22, 14")
    a(f"s_add_u32 s25, s25, {hex(WQKV)}")
    a("v_lshl_add_u32 v4, v1, 4, s25")
    for nt in range(4):
        a(f"v_add_u32 v{12+nt}, {nt*16*1024}, v4")
    a("s_mov_b32 s26, 0\ns_mov_b32 s27, 0")
    XF, WF, ACC = 16, 48, 80
    lv = a.newlabel()
    a("s_cmp_ge_u32 s22, 512")
    a(f"s_cbranch_scc1 {lv}")
    gemm_loop(a, 4, 4, 16, 8, True, [8,9,10,11], [12,13,14,15], XF, WF, ACC, 26, 27, 28)
    a("""
    v_add_u32 v4, s21, v2
    v_lshlrev_b32 v4, 14, v4
    s_lshl_b32 s25, s22, 5
    v_lshl_add_u32 v4, v3, 3, v4
    v_add_u32 v4, s25, v4
    """)
    a(f"v_add_u32 v4, {hex(QK)}, v4")
    for mt in range(4):
        for nt in range(4):
            c = ACC + (nt * 4 + mt) * 4
            a(f"v_cvt_pk_bf16_f32 v{16+(nt&1)*2}, v{c}, v{c+1}")
            a(f"v_cvt_pk_bf16_f32 v{17+(nt&1)*2}, v{c+2}, v{c+3}")
            a(f"buffer_store_dwordx2 v[{16+(nt&1)*2}:{17+(nt&1)*2}], v4, s[8:11], 0 offen offset:{nt*32}")
            a("s_nop 1")
        if mt < 3:
            a(f"v_add_u32 v4, {hex(16*16384)}, v4")
    a("s_endpgm")
    a.label(lv)
    gemm_loop(a, 4, 4, 16, 8, False, [8,9,10,11], [12,13,14,15], XF, WF, ACC, 26, 27, 28)
    a("""
    s_sub_u32 s25, s22, 512
    s_lshl_b32 s25, s25, 4
    v_add_u32 v4, s25, v2
    v_lshlrev_b32 v4, 12, v4
    s_lshl_b32 s25, s21, 1
    v_lshl_add_u32 v4, v3, 3, v4
    v_add_u32 v4, s25, v4
    """)
    a(f"v_add_u32 v4, {hex(VT)}, v4")
    for nt in range(4):
        for mt in range(4):
            c = ACC + (nt * 4 + mt) * 4
            a(f"v_cvt_pk_bf16_f32 v{16+(mt&1)*2}, v{c}, v{c+1}")
            a(f"v_cvt_pk_bf16_f32 v{17+(mt&1)*2}, v{c+2}, v{c+3}")
            a(f"buffer_store_dwordx2 v[{16+(mt&1)*2}:{17+(mt&1)*2}], v4, s[8:11], 0 offen offset:{mt*32}")
            a("s_nop 1")
        if nt < 3:
            a(f"v_add_u32 v4, {hex(16*4096)}, v4")
    a.label(lend)
    a("s_endpgm")
    return kernel_desc(name, 144)

KERNELS = []
def build():
    a = Asm()
    descs = []
    launches = []
    descs.append(gen_prep(a));  launches.append(("prep_kernel", prep_grid(), 256, 0))
    descs.append(gen_gemm1(a)); launches.append(("gemm1_kernel", 1536, 256, 0))
    import gen2
    gen2.add(a, descs, launches)
    hdr = "".join(f"; @launch kernel={k} grid=({g},1,1) block=({b},1,1) lds={l}\n" for k, g, b, l in launches)
    out = hdr + '.amdgcn_target "amdgcn-amd-amdhsa--gfx950"\n.text\n' + a.text()
    out += '.section .rodata,"a"\n' + "".join(descs)
    return out

if __name__ == "__main__":
    sys.path.insert(0, "gen")
    txt = build()
    open(f"cdna_kernels/{NAME}.s", "w").write(txt)
    print("written", len(txt))
```

```python
from gen import *
import gen

SCALE = "0x3db504f3"
LOG2E = "0x3fb8aa3b"

MEMI, KXI, QI, KI, OI, RED, WOI = 0, 8192, 16384, 18432, 20480, 22528, 30720
REC_LDS = 161792
POLL_CAP = 1 << 17

def round_scale(a, regs, t0):
    for i in range(0, len(regs), 2):
        r0, r1 = regs[i], regs[i+1]
        a(f"v_cvt_pk_bf16_f32 v{t0}, v{r0}, v{r1}")
        a(f"v_lshlrev_b32 v{r0}, 16, v{t0}")
        a(f"v_and_b32 v{r1}, 0xffff0000, v{t0}")
        a(f"v_mul_f32 v{r0}, {SCALE}, v{r0}")
        a(f"v_mul_f32 v{r1}, {SCALE}, v{r1}")
        a(f"v_cvt_pk_bf16_f32 v{t0}, v{r0}, v{r1}")
        a(f"v_lshlrev_b32 v{r0}, 16, v{t0}")
        a(f"v_and_b32 v{r1}, 0xffff0000, v{t0}")

def softmax_regs(a, regs, tm, ts, tt):
    a(f"v_max_f32 v{tm}, v{regs[0]}, v{regs[1]}")
    for r in regs[2:]:
        a(f"v_max_f32 v{tm}, v{tm}, v{r}")
    allreduce_groups(a, "v_max_f32", tm, tt)
    for r in regs:
        a(f"v_sub_f32 v{r}, v{r}, v{tm}")
        a(f"v_mul_f32 v{r}, {LOG2E}, v{r}")
        a(f"v_exp_f32 v{r}, v{r}")
    a("s_nop 0")
    a(f"v_add_f32 v{ts}, v{regs[0]}, v{regs[1]}")
    for r in regs[2:]:
        a(f"v_add_f32 v{ts}, v{ts}, v{r}")
    allreduce_groups(a, "v_add_f32", ts, tt)
    a(f"v_rcp_f32 v{ts}, v{ts}")
    a("s_nop 0")
    for r in regs:
        a(f"v_mul_f32 v{r}, v{r}, v{ts}")

import os
STAMP = bool(os.environ.get("STAMP"))
DBGW = 200 * MB
def stamp(a, idx):
    if not STAMP: return
    l = a.newlabel("st")
    a(f"""
    s_cmp_lg_u32 s20, 0
    s_cbranch_scc1 {l}
    s_memtime s[50:51]
    s_lshl_b32 s52, s2, 12
    s_lshl_b32 s53, s30, 6
    s_add_u32 s52, s52, s53
    s_add_u32 s52, s52, {hex(DBGW + idx*4)}
    s_waitcnt lgkmcnt(0)
    s_mov_b64 s[54:55], exec
    s_mov_b64 exec, 1
    v_mov_b32 v0, s50
    v_mov_b32 v2, s52
    buffer_store_dword v0, v2, s[8:11], 0 offen
    s_mov_b64 exec, s[54:55]
    v_and_b32 v2, 15, v1
    """)
    a.label(l)

def gen_rec(a):
    name = "rec_kernel"
    kernel_header(a, name)
    lend = a.newlabel("rend")
    a(f"""
    s_cmp_ge_u32 s2, 256
    s_cbranch_scc1 {lend}
    s_and_b32 s3, s2, 7
    s_cmp_lg_u32 s3, 0
    s_cbranch_scc1 {lend}
    s_lshr_b32 s2, s2, 3
    s_load_dwordx2 s[4:5], s[0:1], {KA_WS}
    v_and_b32 v1, 63, v0
    v_lshrrev_b32 v2, 6, v0
    s_nop 0
    v_readfirstlane_b32 s20, v2
    s_waitcnt lgkmcnt(0)
    """)
    srd(a, 8, 4, WS_BYTES)
    a("""
    v_and_b32 v2, 15, v1          ; m
    v_lshrrev_b32 v3, 4, v1       ; g
    v_and_b32 v18, 7, v1          ; m&7
    """)
    a("s_lshl_b32 s21, s2, 3\ns_add_u32 s21, s21, s20\ns_lshl_b32 s21, s21, 14")
    a("v_lshl_add_u32 v19, v1, 4, s21")
    for j in range(3):
        a(f"v_add_u32 v20, {hex(WQKV + j*4*MB)}, v19")
        for kk in range(16):
            if kk % 4 == 0 and kk:
                a("v_add_u32 v20, 0x1000, v20")
            r = 64 + j*64 + kk*4
            a(f"buffer_load_dwordx4 v[{r}:{r+3}], v20, s[8:11], 0 offen offset:{(kk%4)*1024}")
    a("s_lshl_b32 s21, s20, 19")
    a("s_lshl_b32 s22, s2, 12")
    a("s_add_u32 s21, s21, s22")
    a(f"s_add_u32 s21, s21, {hex(WO)}")
    a("v_lshl_add_u32 v20, v1, 4, s21")
    a("s_lshl_b32 s22, s20, 14")
    a(f"s_add_u32 s22, s22, {WOI}")
    a("v_lshl_add_u32 v21, v1, 4, s22")
    for j in range(4):
        for kk in range(4):
            a(f"buffer_load_dwordx4 v[{24+kk*4}:{27+kk*4}], v20, s[8:11], 0 offen offset:{kk*1024}")
        a("s_waitcnt vmcnt(0)")
        for kk in range(4):
            a(f"ds_write_b128 v21, v[{24+kk*4}:{27+kk*4}] offset:{j*4096 + kk*1024}")
        if j < 3:
            a(f"v_add_u32 v20, {hex(128*1024)}, v20")
        a("s_waitcnt lgkmcnt(0)")
    a(f"""
    v_lshlrev_b32 v5, 3, v3
    v_add_lshl_u32 v5, v5, v18, 4        ; (g*8+(m&7))*16
    v_add_u32 v4, {MEMI}, v5
    s_and_b32 s21, s20, 1
    s_lshl_b32 s21, s21, 1
    v_lshrrev_b32 v6, 1, v3
    v_add_u32 v6, s21, v6
    v_lshlrev_b32 v6, 7, v6
    v_lshl_add_u32 v6, v18, 4, v6
    v_and_b32 v19, 1, v3
    v_lshl_add_u32 v6, v19, 3, v6
    s_lshr_b32 s21, s20, 1
    s_lshl_b32 s21, s21, 9
    v_add_u32 v6, s21, v6
    s_lshl_b32 s21, s20, 14
    s_add_u32 s21, s21, {WOI}
    v_lshl_add_u32 v7, v1, 4, s21
    s_lshl_b32 s21, s20, 10
    v_lshl_add_u32 v9, v1, 4, s21         ; w*1024 + lane*16
    v_add_u32 v8, {hex(M2)}, v9
    v_add_u32 v9, {MEMI}, v9
    s_lshl_b32 s21, s20, 16               ; (4w)*16384
    s_lshl_b32 s22, s2, 9
    s_add_u32 s21, s21, s22
    s_add_u32 s21, s21, {hex(H1)}
    v_add_u32 v10, s21, v5
    s_lshl_b32 s21, s2, 14
    s_lshl_b32 s22, s20, 11
    s_add_u32 s21, s21, s22
    s_add_u32 s21, s21, {hex(H1)}
    v_lshl_add_u32 v11, v1, 4, s21
    v_and_b32 v19, 31, v1
    s_lshl_b32 s21, s20, 9
    s_add_u32 s21, s21, {RED}
    v_lshl_add_u32 v12, v19, 4, s21
    """)
    a(f"""
    s_lshl_b32 s21, s2, 8
    s_lshl_b32 s22, s20, 5
    s_add_u32 s21, s21, s22               ; (h*128+16w)*2
    v_lshlrev_b32 v13, 13, v18
    v_lshl_add_u32 v13, v3, 3, v13
    v_add_u32 v13, s21, v13
    v_add_u32 v13, {hex(KM)}, v13
    """)
    a(f"""
    s_lshl_b32 s22, s21, 3                ; (h*128+16w)*16
    v_lshl_add_u32 v14, v2, 4, s22
    v_and_b32 v19, 1, v3
    v_lshl_add_u32 v14, v19, 3, v14
    v_add_u32 v14, {hex(VMT)}, v14
    """)
    a(f"""
    s_lshr_b32 s21, s20, 2
    s_lshl_b32 s21, s21, 4
    v_add_u32 v15, s21, v2
    v_lshlrev_b32 v15, 14, v15
    s_lshl_b32 s21, s2, 8
    s_and_b32 s22, s20, 3
    s_lshl_b32 s22, s22, 6
    s_add_u32 s21, s21, s22
    s_add_u32 s21, s21, {hex(QK + 8192)}
    v_lshl_add_u32 v15, v3, 4, v15
    v_add_u32 v15, s21, v15
    """)
    a(f"""
    s_lshl_b32 s21, s2, 7
    s_lshl_b32 s22, s20, 4
    s_add_u32 s21, s21, s22
    v_add_u32 v16, s21, v2
    v_lshlrev_b32 v16, 12, v16
    v_lshl_add_u32 v16, v3, 3, v16
    v_add_u32 v16, {hex(VT)}, v16
    """)
    a(f"""
    v_lshrrev_b32 v19, 4, v1
    v_and_b32 v19, 1, v19
    v_lshl_add_u32 v17, v19, 3, v18
    v_lshlrev_b32 v17, 4, v17
    v_lshrrev_b32 v19, 3, v1
    v_and_b32 v19, 1, v19
    v_lshl_add_u32 v17, v19, 3, v17
    s_lshl_b32 s21, s2, 8
    s_add_u32 s21, s21, {hex(M2 + 8192)}
    v_add_u32 v17, s21, v17
    v_cmp_gt_u32 s[40:41], 2, v3
    s_mov_b32 s30, 0                      ; step
    s_mov_b32 s31, 0                      ; s*8192   (M2)
    s_mov_b32 s32, 0                      ; s*524288 (H1)
    s_mov_b32 s33, 0
    s_mov_b32 s34, 0                      ; s*32*16384 (kx)
    s_mov_b32 s35, 0                      ; s*64 (vx)
    """)
    VI = RED + 4096
    def prefetch():
        a("buffer_load_dwordx4 v[56:59], v15, s[8:11], s34 offen")
        lsk = a.newlabel("pf")
        a("s_cmp_ge_u32 s20, 4")
        a(f"s_cbranch_scc1 {lsk}")
        a("buffer_load_dwordx2 v[60:61], v16, s[8:11], s35 offen")
        a("buffer_load_dwordx2 v[62:63], v16, s[8:11], s35 offen offset:32")
        a("v_add_u32 v0, 0x40000, v16")
        a("buffer_load_dwordx2 v[52:53], v0, s[8:11], s35 offen")
        a("buffer_load_dwordx2 v[54:55], v0, s[8:11], s35 offen offset:32")
        a.label(lsk)
    prefetch()
    lstep = a.newlabel("step")
    a.label(lstep)
    stamp(a, 0)
    def chk(regs, tmp):
        a(f"v_max_u32 v{tmp}, v{regs[0]}, v{regs[1]}")
        for i in range(2, len(regs), 2):
            a(f"v_max3_u32 v{tmp}, v{tmp}, v{regs[i]}, v{regs[i+1]}")
        a(f"v_cmp_ne_u32 vcc, -1, v{tmp}")
        a("s_cmp_eq_u64 vcc, exec")
    ND = 4
    lp = a.newlabel("p2")
    ldone = [a.newlabel("p2d") for _ in range(ND)]
    ljoin = a.newlabel("p2j")
    a("s_mov_b32 s36, 0")
    for b in range(ND - 1):
        a(f"buffer_load_dwordx4 v[{20+b*4}:{23+b*4}], v8, s[8:11], s31 offen sc1")
    a.label(lp)
    for b in range(ND):
        nb = (b + ND - 1) % ND
        a(f"buffer_load_dwordx4 v[{20+nb*4}:{23+nb*4}], v8, s[8:11], s31 offen sc1")
        a(f"s_waitcnt vmcnt({ND-1})")
        chk([20+b*4+i for i in range(4)], 36)
        a(f"s_cbranch_scc1 {ldone[b]}")
    a(f"""
    s_add_u32 s36, s36, 1
    s_cmp_lt_u32 s36, {POLL_CAP}
    s_cbranch_scc1 {lp}
    s_branch {ldone[0]}
    """)
    for b in range(ND - 1, -1, -1):
        a.label(ldone[b])
        if b:
            for i in range(4):
                a(f"v_mov_b32 v{20+i}, v{20+b*4+i}")
            a(f"s_branch {ljoin}")
    a.label(ljoin)
    a("ds_write_b128 v9, v[20:23]")
    stamp(a, 1)
    a(f"s_lshl_b32 s21, s20, 10")
    a(f"v_lshl_add_u32 v37, v1, 4, s21")
    a("s_waitcnt vmcnt(0)")
    a(f"ds_write_b128 v37, v[56:59] offset:{KXI}")
    a("s_waitcnt lgkmcnt(0)")
    a("s_barrier")
    stamp(a, 2)
    a("v_lshlrev_b32 v0, 4, v1")
    a("v_sub_u32 v0, v11, v0")
    a("v_lshl_add_u32 v0, v1, 5, v0")
    a("buffer_load_dword v48, v0, s[8:11], s32 offen sc1")
    a("s_add_u32 s21, s31, 8192")
    a("buffer_load_dword v49, v8, s[8:11], s21 offen sc1")
    for i in range(12):
        a(f"v_mov_b32 v{36+i}, 0")
    a("ds_read_b128 v[20:23], v4")
    a("ds_read_b128 v[24:27], v4 offset:512")
    a("ds_read_b128 v[28:31], v4 offset:1024")
    for kk in range(16):
        cur = 20 + (kk & 3) * 4
        nxt = 20 + ((kk + 3) & 3) * 4
        if kk < 13:
            a(f"ds_read_b128 v[{nxt}:{nxt+3}], v4 offset:{(kk+3)*512}")
            a("s_waitcnt lgkmcnt(3)")
        else:
            a(f"s_waitcnt lgkmcnt({15-kk})")
        a(f"v_mfma_f32_16x16x32_bf16 v[36:39], v[{64+kk*4}:{67+kk*4}], v[{cur}:{cur+3}], v[36:39]")
        a(f"v_mfma_f32_16x16x32_bf16 v[40:43], v[{128+kk*4}:{131+kk*4}], v[{cur}:{cur+3}], v[40:43]")
        a(f"v_mfma_f32_16x16x32_bf16 v[44:47], v[{cur}:{cur+3}], v[{192+kk*4}:{195+kk*4}], v[44:47]")
    a("s_nop 7\ns_nop 1")
    a("""
    v_cvt_pk_bf16_f32 v20, v36, v37
    v_cvt_pk_bf16_f32 v21, v38, v39
    v_cvt_pk_bf16_f32 v22, v40, v41
    v_cvt_pk_bf16_f32 v23, v42, v43
    v_cvt_pk_bf16_f32 v18, v44, v45
    v_cvt_pk_bf16_f32 v19, v46, v47
    """)
    a(f"ds_write_b64 v6, v[20:21] offset:{QI}")
    a(f"ds_write_b64 v6, v[22:23] offset:{KI}")
    a("s_lshl_b32 s21, s20, 9")
    a("v_lshl_add_u32 v0, v1, 3, s21")
    a(f"ds_write_b64 v0, v[18:19] offset:{VI}")
    a("buffer_store_dwordx2 v[22:23], v13, s[8:11], s33 offen")
    a("buffer_store_dwordx2 v[18:19], v14, s[8:11], s33 offen")
    stamp(a, 3)
    a("s_cmp_eq_u32 s30, 63")
    a(f"s_cbranch_scc1 {lend}")
    a("s_waitcnt lgkmcnt(0)")
    a("s_barrier")
    stamp(a, 4)
    lsk3 = a.newlabel("sk3")
    a("s_cmp_ge_u32 s20, 4")
    a(f"s_cbranch_scc1 {lsk3}")
    for kk in range(4):
        a(f"ds_read_b128 v[{20+kk*4}:{23+kk*4}], v5 offset:{QI + kk*512}")
    a(f"v_lshlrev_b32 v0, 4, v1")
    seq = [(0, kk) for kk in range(4)] + [(1, kk) for kk in range(4)] + [(2, kk) for kk in range(4)]
    SA = 36
    ring = [48, 56]
    def rd(i):
        t, kk = seq[i]
        r = ring[i & 1]
        if t == 0:
            a(f"ds_read_b128 v[{r}:{r+3}], v5 offset:{KI + kk*512}")
        else:
            a(f"ds_read_b128 v[{r}:{r+3}], v0 offset:{KXI + ((t-1)*4+kk)*1024}")
    rd(0)
    for i in range(12):
        a(f"v_mov_b32 v{SA+i}, 0")
    for i in range(12):
        t, kk = seq[i]
        r = ring[i & 1]
        if i < 11:
            rd(i + 1)
            a("s_waitcnt lgkmcnt(1)")
        else:
            a("s_waitcnt lgkmcnt(0)")
        a(f"v_mfma_f32_16x16x32_bf16 v[{SA+t*4}:{SA+3+t*4}], v[{r}:{r+3}], v[{20+kk*4}:{23+kk*4}], v[{SA+t*4}:{SA+3+t*4}]")
    a("s_lshl_b32 s21, s20, 9")
    a("v_lshl_add_u32 v0, v1, 3, s21")
    a(f"ds_read_b64 v[48:49], v0 offset:{VI + 2048}")
    a("s_nop 7")
    S = list(range(SA, SA + 12))
    round_scale(a, S, 20)
    a("v_mov_b32 v20, 0xff800000")
    for r in range(SA, SA + 4):
        a(f"v_cndmask_b32 v{r}, v20, v{r}, s[40:41]")
    softmax_regs(a, S, 21, 22, 23)
    for i in range(6):
        a(f"v_cvt_pk_bf16_f32 v{20+i}, v{SA+2*i}, v{SA+1+2*i}")
    for i in range(8):
        a(f"v_mov_b32 v{28+i}, 0")
    a("s_waitcnt lgkmcnt(0)")
    a("v_mfma_f32_16x16x16_bf16 v[28:31], v[18:19], v[20:21], v[28:31]")
    a("v_mfma_f32_16x16x16_bf16 v[32:35], v[48:49], v[20:21], v[32:35]")
    a("s_nop 7")
    a("v_mfma_f32_16x16x32_bf16 v[28:31], v[60:63], v[22:25], v[28:31]")
    a("v_mfma_f32_16x16x32_bf16 v[32:35], v[52:55], v[22:25], v[32:35]")
    a("s_nop 7\ns_nop 1")
    a("v_cvt_pk_bf16_f32 v20, v28, v29")
    a("v_cvt_pk_bf16_f32 v21, v30, v31")
    a("v_cvt_pk_bf16_f32 v22, v32, v33")
    a("v_cvt_pk_bf16_f32 v23, v34, v35")
    a(f"ds_write_b64 v6, v[20:21] offset:{OI}")
    a(f"ds_write_b64 v6, v[22:23] offset:{OI + 1024}")
    stamp(a, 5)
    a("s_waitcnt lgkmcnt(0)")
    a.label(lsk3)
    items = [(j, kk) for j in range(4) for kk in range(4)]
    def rdw(i):
        j, kk = items[i]
        r = 36 + (i & 3) * 4
        a(f"ds_read_b128 v[{r}:{r+3}], v7 offset:{j*4096 + kk*1024}")
    for i in range(3):
        rdw(i)
    a("s_barrier")
    stamp(a, 6)
    for kk in range(4):
        a(f"ds_read_b128 v[{20+kk*4}:{23+kk*4}], v5 offset:{OI + kk*512}")
    a("v_mov_b32 v0, v10")
    for i in range(16):
        j, kk = items[i]
        r = 36 + (i & 3) * 4
        acc = 52 if (j & 1) == 0 else 56
        if kk == 0:
            for t in range(4):
                a(f"v_mov_b32 v{acc+t}, 0")
        if i < 13:
            rdw(i + 3)
            a("s_waitcnt lgkmcnt(3)" if i >= 4 else "s_waitcnt lgkmcnt(0)" if i == 0 else "s_waitcnt lgkmcnt(3)")
        else:
            a(f"s_waitcnt lgkmcnt({15-i})")
        a(f"v_mfma_f32_16x16x32_bf16 v[{acc}:{acc+3}], v[{r}:{r+3}], v[{20+kk*4}:{23+kk*4}], v[{acc}:{acc+3}]")
        if kk == 3:
            a("s_nop 7\ns_nop 1")
            for t in range(4):
                a(f"v_min_u32 v{acc+t}, -2, v{acc+t}")
            a(f"buffer_store_dwordx4 v[{acc}:{acc+3}], v0, s[8:11], s32 offen")
            a("v_add_u32 v0, 0x4000, v0")
    stamp(a, 7)
    a("s_add_u32 s34, s34, 0x80000")
    a("s_add_u32 s35, s35, 64")
    a("s_nop 1")
    prefetch()
    lp = a.newlabel("p1")
    ld0 = a.newlabel("p1a"); ld1 = a.newlabel("p1b"); lj = a.newlabel("p1j")
    a("s_mov_b32 s36, 0")
    def ld(b):
        a(f"buffer_load_dwordx4 v[{20+b*8}:{23+b*8}], v11, s[8:11], s32 offen sc1")
        a(f"buffer_load_dwordx4 v[{24+b*8}:{27+b*8}], v11, s[8:11], s32 offen offset:1024 sc1")
    ld(0)
    a.label(lp)
    ld(1)
    a("s_waitcnt vmcnt(2)")
    chk(list(range(20, 28)), 36)
    a(f"s_cbranch_scc1 {ld0}")
    ld(0)
    a("s_waitcnt vmcnt(2)")
    chk(list(range(28, 36)), 36)
    a(f"s_cbranch_scc1 {ld1}")
    a(f"""
    s_add_u32 s36, s36, 1
    s_cmp_lt_u32 s36, {POLL_CAP}
    s_cbranch_scc1 {lp}
    s_branch {ld0}
    """)
    a.label(ld1)
    for i in range(4):
        a(f"v_add_f32 v{36+i}, v{28+i}, v{32+i}")
    a(f"s_branch {lj}")
    a.label(ld0)
    for i in range(4):
        a(f"v_add_f32 v{36+i}, v{20+i}, v{24+i}")
    a.label(lj)
    stamp(a, 8)
    for i in range(4):
        a(f"v_mov_b32 v{40+i}, v{36+i}")
    a("s_nop 1")
    for i in range(4):
        a(f"v_permlane32_swap_b32 v{36+i}, v{40+i}")
    a("s_nop 1")
    for i in range(4):
        a(f"v_add_f32 v{36+i}, v{36+i}, v{40+i}")
    a("ds_write_b128 v12, v[36:39]")
    a("s_waitcnt lgkmcnt(0)")
    a("s_barrier")
    stamp(a, 9)
    lnw = a.newlabel("nw")
    a("s_cmp_lg_u32 s20, 0")
    a(f"s_cbranch_scc1 {lnw}")
    a("v_lshlrev_b32 v0, 4, v1")
    a("s_waitcnt vmcnt(0)")
    for i in range(4):
        a(f"ds_read_b128 v[{20+i*4}:{23+i*4}], v0 offset:{RED + i*1024}")
    a("s_waitcnt lgkmcnt(0)")
    for i in range(4):
        a(f"v_add_f32 v{20+i}, v{20+i}, v{24+i}")
        a(f"v_add_f32 v{28+i}, v{28+i}, v{32+i}")
    for i in range(4):
        a(f"v_add_f32 v{20+i}, v{20+i}, v{28+i}")
    for i in range(4):
        a(f"v_mov_b32 v{24+i}, v{20+i}")
    a("s_nop 1")
    for i in range(4):
        a(f"v_permlane32_swap_b32 v{20+i}, v{24+i}")
    a("s_nop 1")
    for i in range(4):
        a(f"v_add_f32 v{20+i}, v{20+i}, v{24+i}")
    a("v_cvt_pk_bf16_f32 v24, v20, v21")
    a("v_cvt_pk_bf16_f32 v25, v22, v23")
    a("v_min_u32 v24, -2, v24")
    a("v_min_u32 v25, -2, v25")
    a("buffer_store_dwordx2 v[24:25], v17, s[8:11], s31 offen")
    stamp(a, 10)
    a.label(lnw)
    a(f"""
    s_add_u32 s30, s30, 1
    s_add_u32 s31, s31, 8192
    s_add_u32 s32, s32, 0x80000
    s_add_u32 s33, s33, 0x10000
    s_branch {lstep}
    """)
    a.label(lend)
    a("s_endpgm")
    return kernel_desc(name, 256)

def gen_attn(a):
    name = "attn_kernel"
    kernel_header(a, name)
    lend = a.newlabel("aend")
    a(f"""
    s_cmp_ge_u32 s2, 512
    s_cbranch_scc1 {lend}
    s_load_dwordx2 s[4:5], s[0:1], {KA_WS}
    v_and_b32 v1, 63, v0
    v_lshrrev_b32 v2, 6, v0
    s_nop 0
    v_readfirstlane_b32 s20, v2
    s_waitcnt lgkmcnt(0)
    """)
    srd(a, 8, 4, WS_BYTES)
    a(f"""
    s_lshl_b32 s21, s2, 2
    s_add_u32 s21, s21, s20
    s_and_b32 s22, s21, 31        ; h
    s_lshr_b32 s23, s21, 5        ; s
    v_and_b32 v2, 15, v1
    v_lshrrev_b32 v3, 4, v1
    v_and_b32 v4, 7, v1
    s_lshl_b32 s24, s23, 19
    s_lshl_b32 s25, s22, 8
    s_add_u32 s24, s24, s25
    s_add_u32 s24, s24, {hex(QK)}
    v_lshlrev_b32 v5, 14, v2
    v_lshl_add_u32 v5, v3, 4, v5
    v_add_u32 v5, s24, v5
    v_add_u32 v6, {hex(16*16384)}, v5
    s_lshl_b32 s24, s23, 16
    s_add_u32 s24, s24, s25
    s_add_u32 s24, s24, {hex(KM)}
    v_lshlrev_b32 v7, 13, v4
    v_lshl_add_u32 v7, v3, 4, v7
    v_add_u32 v7, s24, v7
    """)
    for tt in range(2):
        for kk in range(4):
            r = 16 + (tt*4+kk)*4
            a(f"buffer_load_dwordx4 v[{r}:{r+3}], v{5+tt}, s[8:11], 0 offen offset:{kk*64}")
    for kk in range(4):
        r = 48 + kk*4
        a(f"buffer_load_dwordx4 v[{r}:{r+3}], v7, s[8:11], 0 offen offset:{kk*64}")
    a("v_add_u32 v8, 0x2000, v5\nv_add_u32 v9, 0x2000, v6")
    for t in range(1, 3):
        for kk in range(4):
            r = 48 + (t*4+kk)*4
            a(f"buffer_load_dwordx4 v[{r}:{r+3}], v{7+t}, s[8:11], 0 offen offset:{kk*64}")
    ACC = 96
    for i in range(24):
        a(f"v_mov_b32 v{ACC+i}, 0")
    a("s_waitcnt vmcnt(0)")
    for t in range(3):
        for tt in range(2):
            for kk in range(4):
                c = ACC + (t*2+tt)*4
                a(f"v_mfma_f32_16x16x32_bf16 v[{c}:{c+3}], v[{48+(t*4+kk)*4}:{51+(t*4+kk)*4}], v[{16+(tt*4+kk)*4}:{19+(tt*4+kk)*4}], v[{c}:{c+3}]")
    a("s_nop 7\ns_nop 1")
    a(f"""
    s_lshl_b32 s24, s23, 16
    s_lshl_b32 s25, s22, 11
    s_add_u32 s24, s24, s25
    s_add_u32 s24, s24, {hex(VMT)}
    v_and_b32 v10, 1, v3
    v_lshlrev_b32 v10, 3, v10
    v_lshl_add_u32 v10, v2, 4, v10
    v_add_u32 v10, s24, v10
    s_lshl_b32 s24, s22, 19
    s_lshl_b32 s25, s23, 6
    s_add_u32 s24, s24, s25
    s_add_u32 s24, s24, {hex(VT)}
    v_lshlrev_b32 v11, 12, v2
    v_lshl_add_u32 v11, v3, 3, v11
    v_add_u32 v11, s24, v11
    """)
    for et in range(8):
        r = 16 + et*6
        a(f"buffer_load_dwordx2 v[{r}:{r+1}], v10, s[8:11], 0 offen offset:{et*256}")
        a(f"buffer_load_dwordx2 v[{r+2}:{r+3}], v11, s[8:11], 0 offen")
        a(f"buffer_load_dwordx2 v[{r+4}:{r+5}], v11, s[8:11], 0 offen offset:32")
        if et < 7:
            a("v_add_u32 v11, 0x10000, v11")
    a("v_lshlrev_b32 v12, 2, v3")
    a("v_sub_u32 v12, v2, v12")
    a("v_cmp_gt_u32 s[40:41], 2, v3")
    a("v_mov_b32 v13, 0xff800000")
    P = 64
    for tt in range(2):
        S = [ACC + (t*2+tt)*4 + r for t in range(3) for r in range(4)]
        round_scale(a, S, 14)
        for r in range(4):
            a(f"v_cndmask_b32 v{S[r]}, v13, v{S[r]}, s[40:41]")
        for t in range(1, 3):
            for r in range(4):
                cst = (t-1)*16 + r - tt*16
                a(f"v_cmp_le_i32 vcc, {cst}, v12")
                a("s_nop 1")
                a(f"v_cndmask_b32 v{S[t*4+r]}, v13, v{S[t*4+r]}, vcc")
        softmax_regs(a, S, 14, 15, 90)
        for i in range(6):
            a(f"v_cvt_pk_bf16_f32 v{P+tt*6+i}, v{S[2*i]}, v{S[2*i+1]}")
    a(f"""
    ; OB + (s*32 + (l&15))*8192 + h*256 + g*8
    s_lshl_b32 s24, s23, 18
    s_lshl_b32 s25, s22, 8
    s_add_u32 s24, s24, s25
    s_add_u32 s24, s24, {hex(OB)}
    v_lshlrev_b32 v12, 13, v2
    v_lshl_add_u32 v12, v3, 3, v12
    v_add_u32 v12, s24, v12
    v_add_u32 v13, {hex(16*8192)}, v12
    s_waitcnt vmcnt(0)
    """)
    OA = 80
    for et in range(8):
        r = 16 + et*6
        for tt in range(2):
            c = OA + tt*4
            for i in range(4):
                a(f"v_mov_b32 v{c+i}, 0")
            a("s_nop 1")
            a(f"v_mfma_f32_16x16x16_bf16 v[{c}:{c+3}], v[{r}:{r+1}], v[{P+tt*6}:{P+tt*6+1}], v[{c}:{c+3}]")
            a("s_nop 7")
            a(f"v_mfma_f32_16x16x32_bf16 v[{c}:{c+3}], v[{r+2}:{r+5}], v[{P+tt*6+2}:{P+tt*6+5}], v[{c}:{c+3}]")
        a("s_nop 7\ns_nop 1")
        for tt in range(2):
            c = OA + tt*4
            a(f"v_cvt_pk_bf16_f32 v{88+tt*2}, v{c}, v{c+1}")
            a(f"v_cvt_pk_bf16_f32 v{89+tt*2}, v{c+2}, v{c+3}")
            a(f"buffer_store_dwordx2 v[{88+tt*2}:{89+tt*2}], v{12+tt}, s[8:11], 0 offen offset:{et*32}")
        a("s_nop 1")
    a.label(lend)
    a("s_endpgm")
    return kernel_desc(name, 120)

def gen_splitk(a, name, A_off, lda, W_off, kk_per_wave, w_nt_stride, w_kk_stride, res_from_x, out_to_dout):
    kernel_header(a, name)
    lend = a.newlabel("send")
    a(f"""
    s_cmp_ge_u32 s2, 256
    s_cbranch_scc1 {lend}
    s_load_dwordx2 s[4:5], s[0:1], {KA_WS}
    s_load_dwordx2 s[6:7], s[0:1], {KA_X if res_from_x else KA_OUT}
    v_and_b32 v1, 63, v0
    v_lshrrev_b32 v2, 6, v0
    s_nop 0
    v_readfirstlane_b32 s20, v2
    s_waitcnt lgkmcnt(0)
    """)
    srd(a, 8, 4, WS_BYTES)
    srd(a, 12, 6, 2 * MB)
    a(f"""
    s_and_b32 s21, s2, 31
    s_lshl_b32 s21, s21, 6            ; m0
    s_lshr_b32 s22, s2, 5
    s_lshl_b32 s22, s22, 2            ; nt0
    v_and_b32 v2, 15, v1
    v_lshrrev_b32 v3, 4, v1
    v_add_u32 v4, s21, v2
    s_mov_b32 s23, {lda}
    v_mul_lo_u32 v4, v4, s23
    v_lshl_add_u32 v4, v3, 4, v4
    v_add_u32 v4, {hex(A_off)}, v4
    """)
    for mt in range(4):
        a(f"v_add_u32 v{8+mt}, {mt*16*lda}, v4")
    a(f"s_mul_i32 s25, s22, {w_nt_stride}")
    a(f"s_add_u32 s25, s25, {hex(W_off)}")
    a("v_lshl_add_u32 v4, v1, 4, s25")
    for nt in range(4):
        a(f"v_add_u32 v{12+nt}, {nt*w_nt_stride}, v4")
    a(f"s_mul_i32 s26, s20, {kk_per_wave*64}")
    a(f"s_mul_i32 s27, s20, {kk_per_wave*w_kk_stride}")
    XF, WF, ACC = 16, 48, 80
    gemm_loop(a, 4, 4, kk_per_wave, 8, True, [8,9,10,11], [12,13,14,15], XF, WF, ACC, 26, 27, 28, wstride=w_kk_stride)
    a("s_lshl_b32 s25, s20, 14")
    a("v_lshl_add_u32 v4, v1, 4, s25")
    for q in range(16):
        a(f"ds_write_b128 v4, v[{ACC+q*4}:{ACC+q*4+3}] offset:{q*1024}")
    a("s_waitcnt lgkmcnt(0)")
    a("s_barrier")
    a("s_lshl_b32 s25, s20, 12")
    a("v_lshl_add_u32 v4, v1, 4, s25")
    for v in range(4):
        for i in range(4):
            r = 16 + (v*4+i)*4
            a(f"ds_read_b128 v[{r}:{r+3}], v4 offset:{v*16384 + i*1024}")
    a(f"""
    v_add_u32 v5, s21, v2
    v_lshlrev_b32 v5, 10, v5
    s_add_u32 s25, s22, s20
    s_lshl_b32 s25, s25, 5
    v_lshl_add_u32 v5, v3, 3, v5
    v_add_u32 v5, s25, v5
    v_add_u32 v6, {hex(HB)}, v5
    """)
    for mt in range(4):
        if res_from_x:
            a(f"v_add_u32 v7, {mt*16*1024}, v5")
            a(f"buffer_load_dwordx2 v[{80+mt*2}:{81+mt*2}], v7, s[12:15], 0 offen")
        else:
            a(f"v_add_u32 v7, {mt*16*1024}, v6")
            a(f"buffer_load_dwordx2 v[{80+mt*2}:{81+mt*2}], v7, s[8:11], 0 offen")
    a("s_waitcnt vmcnt(0) lgkmcnt(0)")
    for mt in range(4):
        for i in range(4):
            r = 16 + mt*4 + i
            a(f"v_add_f32 v{r}, v{r}, v{r+16}")
            a(f"v_add_f32 v{r+32}, v{r+32}, v{r+48}")
            a(f"v_add_f32 v{r}, v{r}, v{r+32}")
        r = 16 + mt*4
        a(f"v_cvt_pk_bf16_f32 v90, v{r}, v{r+1}")
        a(f"v_cvt_pk_bf16_f32 v91, v{r+2}, v{r+3}")
        for j in range(2):
            a(f"v_lshlrev_b32 v92, 16, v{90+j}")
            a(f"v_and_b32 v93, 0xffff0000, v{90+j}")
            a(f"v_lshlrev_b32 v94, 16, v{80+mt*2+j}")
            a(f"v_and_b32 v95, 0xffff0000, v{80+mt*2+j}")
            a("v_add_f32 v92, v92, v94")
            a("v_add_f32 v93, v93, v95")
            a(f"v_cvt_pk_bf16_f32 v{96+mt*2+j}, v92, v93")
        if out_to_dout:
            a(f"v_add_u32 v7, {mt*16*1024}, v5")
            a(f"buffer_store_dwordx2 v[{96+mt*2}:{97+mt*2}], v7, s[12:15], 0 offen")
        else:
            a(f"v_add_u32 v7, {mt*16*1024}, v6")
            a(f"buffer_store_dwordx2 v[{96+mt*2}:{97+mt*2}], v7, s[8:11], 0 offen")
    a.label(lend)
    a("s_endpgm")
    return kernel_desc(name, 144)

def gen_ln2(a):
    name = "ln2_kernel"
    kernel_header(a, name)
    lend = a.newlabel("lend")
    a(f"""
    s_cmp_ge_u32 s2, 512
    s_cbranch_scc1 {lend}
    s_load_dwordx2 s[4:5], s[0:1], {KA_WS}
    v_and_b32 v1, 63, v0
    v_lshrrev_b32 v4, 6, v0
    s_waitcnt lgkmcnt(0)
    """)
    srd(a, 8, 4, WS_BYTES)
    a("s_lshl_b32 s3, s2, 2")
    a("v_add_u32 v4, s3, v4")
    emit_ln_row(a, 8, HB, 8, HN, 4)
    a.label(lend)
    a("s_endpgm")
    return kernel_desc(name, 48)

def gen_ffn1(a):
    name = "ffn1_kernel"
    kernel_header(a, name)
    lend = a.newlabel("fend")
    a(f"""
    s_cmp_ge_u32 s2, 448
    s_cbranch_scc1 {lend}
    s_load_dwordx2 s[4:5], s[0:1], {KA_WS}
    v_and_b32 v1, 63, v0
    v_lshrrev_b32 v2, 6, v0
    s_nop 0
    v_readfirstlane_b32 s20, v2
    s_waitcnt lgkmcnt(0)
    """)
    srd(a, 8, 4, WS_BYTES)
    a(f"""
    s_lshl_b32 s21, s2, 2
    s_add_u32 s21, s21, s20
    s_lshr_b32 s22, s21, 5            ; fb (0..55)
    s_and_b32 s21, s21, 31
    s_lshl_b32 s21, s21, 6            ; m0
    v_and_b32 v2, 15, v1
    v_lshrrev_b32 v3, 4, v1
    v_add_u32 v4, s21, v2
    v_lshlrev_b32 v4, 10, v4
    v_lshl_add_u32 v4, v3, 4, v4
    v_add_u32 v4, {hex(HN)}, v4
    """)
    for mt in range(4):
        a(f"v_add_u32 v{8+mt}, {mt*16*1024}, v4")
    a("s_lshl_b32 s25, s22, 15")
    a("v_lshl_add_u32 v4, v1, 4, s25")
    a(f"v_add_u32 v12, {hex(WG)}, v4")
    a(f"v_add_u32 v13, {hex(WG+16384)}, v4")
    a(f"v_add_u32 v14, {hex(WU)}, v4")
    a(f"v_add_u32 v15, {hex(WU+16384)}, v4")
    a("s_mov_b32 s26, 0\ns_mov_b32 s27, 0")
    XF, WF, ACC = 16, 48, 80
    gemm_loop(a, 4, 4, 16, 8, True, [8,9,10,11], [12,13,14,15], XF, WF, ACC, 26, 27, 28)
    a(f"""
    v_add_u32 v4, s21, v2
    s_mov_b32 s25, 3584
    v_mul_lo_u32 v4, v4, s25
    s_lshl_b32 s25, s22, 6
    v_lshl_add_u32 v4, v3, 3, v4
    v_add_u32 v4, s25, v4
    v_add_u32 v4, {hex(HH)}, v4
    """)
    for mt in range(4):
        for nt in range(2):
            cg = ACC + (nt*4+mt)*4
            cu = ACC + ((nt+2)*4+mt)*4
            o = 16 + nt*2
            for j in range(2):
                a(f"v_cvt_pk_bf16_f32 v20, v{cg+2*j}, v{cg+2*j+1}")
                a(f"v_cvt_pk_bf16_f32 v21, v{cu+2*j}, v{cu+2*j+1}")
                a("v_lshlrev_b32 v22, 16, v20")
                a("v_and_b32 v23, 0xffff0000, v20")
                a("v_lshlrev_b32 v24, 16, v21")
                a("v_and_b32 v25, 0xffff0000, v21")
                a("v_mul_f32 v22, v22, v24")
                a("v_mul_f32 v23, v23, v25")
                a(f"v_cvt_pk_bf16_f32 v{o+j}, v22, v23")
            a(f"buffer_store_dwordx2 v[{o}:{o+1}], v4, s[8:11], 0 offen offset:{nt*32}")
            a("s_nop 1")
        if mt < 3:
            a(f"v_add_u32 v4, {16*3584}, v4")
    a.label(lend)
    a("s_endpgm")
    return kernel_desc(name, 144)

def add(a, descs, launches):
    descs.append(gen_rec(a));  launches.append(("rec_kernel", 256, 512, REC_LDS))
    descs.append(gen_attn(a)); launches.append(("attn_kernel", 512, 256, 0))
    descs.append(gen_splitk(a, "wo_kernel", OB, 8192, WO, 32, 128*1024, 1024, True, False))
    launches.append(("wo_kernel", 256, 256, 65536))
    descs.append(gen_ln2(a));  launches.append(("ln2_kernel", 512, 256, 0))
    descs.append(gen_ffn1(a)); launches.append(("ffn1_kernel", 448, 256, 0))
    descs.append(gen_splitk(a, "ffn2_kernel", HH, 3584, WD, 14, 1024, 32*1024, False, True))
    launches.append(("ffn2_kernel", 256, 256, 65536))

def add_tail(a, descs, launches):
    descs.append(gen_splitk(a, "wo_kernel", OB, 8192, WO, 32, 128*1024, 1024, True, False))
    launches.append(("wo_kernel", 256, 256, 65536))
    descs.append(gen_ln2(a));  launches.append(("ln2_kernel", 512, 256, 0))
    descs.append(gen_ffn1(a)); launches.append(("ffn1_kernel", 448, 256, 0))
    descs.append(gen_splitk(a, "ffn2_kernel", HH, 3584, WD, 14, 1024, 32*1024, False, True))
    launches.append(("ffn2_kernel", 256, 256, 65536))
```

```python
from gen import *
import gen, os
from gen2 import round_scale, softmax_regs, SCALE, LOG2E, POLL_CAP, DBGW

STAMP = bool(os.environ.get("STAMP"))
FL = 113 * MB
FKV, FQ, FR, XT = FL, FL + 4096, FL + 8192, FL + 24576
FL_BYTES = 32768

MEMI, KXI, QI, KI, VI, VXI, WOI = 0, 8192, 16384, 18432, 20480, 24576, 32768
OI = MEMI
RED = QI
MEGA_LDS = WOI + 131072

def stamp(a, idx, wave=0):
    if not STAMP: return
    l = a.newlabel("st")
    a(f"""
    s_cmp_lg_u32 s20, {wave}
    s_cbranch_scc1 {l}
    s_memtime s[50:51]
    s_lshl_b32 s52, s2, 12
    s_lshl_b32 s53, s30, 6
    s_add_u32 s52, s52, s53
    s_add_u32 s52, s52, {hex(DBGW + idx*4)}
    s_waitcnt lgkmcnt(0)
    s_mov_b64 s[54:55], exec
    s_mov_b64 exec, 1
    v_mov_b32 v0, s50
    v_mov_b32 v2, s52
    buffer_store_dword v0, v2, s[8:11], 0 offen
    s_mov_b64 exec, s[54:55]
    v_and_b32 v2, 15, v1
    """)
    a.label(l)

def chk(a, regs, tmp):
    a(f"v_max_u32 v{tmp}, v{regs[0]}, v{regs[1]}")
    for i in range(2, len(regs), 2):
        a(f"v_max3_u32 v{tmp}, v{tmp}, v{regs[i]}, v{regs[i+1]}")
    a(f"v_cmp_ne_u32 vcc, -1, v{tmp}")
    a("s_cmp_eq_u64 vcc, exec")

def wait_flag(a, saddr, vt):
    lp = a.newlabel("wf"); ld = a.newlabel("wfd")
    a(f"v_mov_b32 v{vt}, s{saddr}")
    a("s_mov_b32 s37, 0")
    a.label(lp)
    a(f"buffer_load_dword v{vt+1}, v{vt}, s[8:11], 0 offen sc1")
    a("s_waitcnt vmcnt(0)")
    a(f"v_readfirstlane_b32 s38, v{vt+1}")
    a("s_add_u32 s37, s37, 1")
    a("s_cmp_lg_u32 s38, 0")
    a(f"s_cbranch_scc1 {ld}")
    a("s_sleep 2")
    a(f"s_cmp_lt_u32 s37, {POLL_CAP*8}")
    a(f"s_cbranch_scc1 {lp}")
    a.label(ld)

def rec_loop(a, fast, lend):
    S1 = "" if fast else " sc1"
    def prefetch():
        a(f"s_lshl_b32 s21, s20, 11\ns_add_u32 s21, s21, {KXI}\ns_mov_b32 m0, s21\ns_nop 0")
        a("buffer_load_dwordx4 v15, s[8:11], s34 offen sc1 lds")
        a("s_add_u32 s21, s21, 1024\ns_mov_b32 m0, s21\nv_add_u32 v0, 64, v15")
        a("buffer_load_dwordx4 v0, s[8:11], s34 offen sc1 lds")
        a(f"s_lshl_b32 s21, s20, 10\ns_add_u32 s21, s21, {VXI}\ns_mov_b32 m0, s21\ns_nop 0")
        a("buffer_load_dwordx4 v16, s[8:11], s35 offen sc1 lds")
        a("s_add_u32 s21, s21, 4096\ns_mov_b32 m0, s21\nv_add_u32 v0, 0x40000, v16")
        a("buffer_load_dwordx4 v0, s[8:11], s35 offen sc1 lds")
    def wait_kv(seg_sreg_expr):
        pass
    lx = a.newlabel("ip")
    a("s_cmp_ge_u32 s20, 4")
    a(f"s_cbranch_scc1 {lx}")
    a(f"s_lshl_b32 s21, s2, 2\ns_add_u32 s21, s21, {hex(FKV)}")
    wait_flag(a, 21, 20)
    prefetch()
    a.label(lx)
    lstep = a.newlabel("step")
    a.label(lstep)
    stamp(a, 0, 4)
    lg = a.newlabel("g1"); lb1 = a.newlabel("b1")
    a("s_cmp_ge_u32 s20, 4")
    a(f"s_cbranch_scc1 {lg}")
    a("s_waitcnt vmcnt(0)")
    a(f"s_branch {lb1}")
    a.label(lg)
    lp = a.newlabel("p2"); ld0 = a.newlabel("p2a"); ld1 = a.newlabel("p2b"); lj = a.newlabel("p2j")
    def ld2(b):
        a(f"buffer_load_dwordx4 v[{20+b*8}:{23+b*8}], v8, s[8:11], s31 offen sc1")
        a(f"buffer_load_dwordx4 v[{24+b*8}:{27+b*8}], v8, s[8:11], s31 offen offset:1024 sc1")
    a("s_mov_b32 s36, 0")
    ld2(0)
    a.label(lp)
    ld2(1)
    a("s_waitcnt vmcnt(2)")
    chk(a, list(range(20, 28)), 36)
    a(f"s_cbranch_scc1 {ld0}")
    ld2(0)
    a("s_waitcnt vmcnt(2)")
    chk(a, list(range(28, 36)), 36)
    a(f"s_cbranch_scc1 {ld1}")
    a(f"s_add_u32 s36, s36, 1\ns_cmp_lt_u32 s36, {POLL_CAP}\ns_cbranch_scc1 {lp}\ns_branch {ld0}")
    a.label(ld1)
    a("ds_write_b128 v9, v[28:31]")
    a("ds_write_b128 v9, v[32:35] offset:1024")
    a(f"s_branch {lj}")
    a.label(ld0)
    a("ds_write_b128 v9, v[20:23]")
    a("ds_write_b128 v9, v[24:27] offset:1024")
    a.label(lj)
    a("s_waitcnt vmcnt(0)")
    a.label(lb1)
    stamp(a, 1, 4)
    a("s_waitcnt lgkmcnt(0)")
    a("s_barrier")
    stamp(a, 2, 4)
    lnf = a.newlabel("nf")
    a("s_cmp_lg_u32 s20, 5")
    a(f"s_cbranch_scc1 {lnf}")
    a("s_cmp_eq_u32 s30, 0")
    a(f"s_cbranch_scc1 {lnf}")
    a(f"s_lshl_b32 s21, s30, 7\ns_lshl_b32 s22, s2, 2\ns_add_u32 s21, s21, s22\ns_add_u32 s21, s21, {hex(FR - 128)}")
    a("v_mov_b32 v36, s21\nv_mov_b32 v37, 1")
    a("s_mov_b64 s[54:55], exec\ns_mov_b64 exec, 1")
    a("buffer_store_dword v37, v36, s[8:11], 0 offen sc1")
    a("s_mov_b64 exec, s[54:55]")
    a.label(lnf)
    lw2 = a.newlabel("wm2")
    a("s_cmp_lt_u32 s20, 4")
    a(f"s_cbranch_scc1 {lw2}")
    if os.environ.get("NOWARM"):
        a(f"s_branch {lw2}")
    a("v_lshlrev_b32 v0, 4, v1")
    a("v_sub_u32 v0, v11, v0")
    a("v_lshl_add_u32 v0, v1, 6, v0")
    a("buffer_load_dword v62, v0, s[8:11], s32 offen sc1")
    a("s_add_u32 s21, s31, 8192")
    a("v_lshlrev_b32 v0, 4, v1")
    a("v_sub_u32 v0, v8, v0")
    a("v_lshl_add_u32 v0, v1, 5, v0")
    a("buffer_load_dword v63, v0, s[8:11], s21 offen sc1")
    a.label(lw2)
    for i in range(12):
        a(f"v_mov_b32 v{36+i}, 0")
    a("ds_read_b128 v[20:23], v4")
    a("ds_read_b128 v[24:27], v4 offset:512")
    a("ds_read_b128 v[28:31], v4 offset:1024")
    for kk in range(16):
        cur = 20 + (kk & 3) * 4
        nxt = 20 + ((kk + 3) & 3) * 4
        if kk < 13:
            a(f"ds_read_b128 v[{nxt}:{nxt+3}], v4 offset:{(kk+3)*512}")
            a("s_waitcnt lgkmcnt(3)")
        else:
            a(f"s_waitcnt lgkmcnt({15-kk})")
        a(f"v_mfma_f32_16x16x32_bf16 v[36:39], v[{64+kk*4}:{67+kk*4}], v[{cur}:{cur+3}], v[36:39]")
        a(f"v_mfma_f32_16x16x32_bf16 v[40:43], v[{128+kk*4}:{131+kk*4}], v[{cur}:{cur+3}], v[40:43]")
        a(f"v_mfma_f32_16x16x32_bf16 v[44:47], v[{cur}:{cur+3}], v[{192+kk*4}:{195+kk*4}], v[44:47]")
    a("s_nop 7\ns_nop 1")
    a("""
    v_cvt_pk_bf16_f32 v20, v36, v37
    v_cvt_pk_bf16_f32 v21, v38, v39
    v_cvt_pk_bf16_f32 v22, v40, v41
    v_cvt_pk_bf16_f32 v23, v42, v43
    v_cvt_pk_bf16_f32 v18, v44, v45
    v_cvt_pk_bf16_f32 v19, v46, v47
    """)
    a(f"ds_write_b64 v6, v[20:21] offset:{QI}")
    a(f"ds_write_b64 v6, v[22:23] offset:{KI}")
    a("s_lshl_b32 s21, s20, 9")
    a("v_lshl_add_u32 v0, v1, 3, s21")
    a(f"ds_write_b64 v0, v[18:19] offset:{VI}")
    a("buffer_store_dwordx2 v[22:23], v13, s[8:11], s33 offen sc1")
    a("buffer_store_dwordx2 v[18:19], v14, s[8:11], s33 offen sc1")
    stamp(a, 3, 4)
    llast = a.newlabel("last")
    a("s_cmp_eq_u32 s30, 63")
    a(f"s_cbranch_scc1 {llast}")
    a("s_waitcnt lgkmcnt(0)")
    a("s_barrier")
    stamp(a, 4, 4)
    lsk3 = a.newlabel("sk3")
    a("s_cmp_ge_u32 s20, 4")
    a(f"s_cbranch_scc1 {lsk3}")
    for kk in range(4):
        a(f"ds_read_b128 v[{20+kk*4}:{23+kk*4}], v5 offset:{QI + kk*512}")
    a(f"v_lshlrev_b32 v0, 4, v1")
    seq = [(0, kk) for kk in range(4)] + [(1, kk) for kk in range(4)] + [(2, kk) for kk in range(4)]
    SA = 36
    ring = [48, 56]
    def rd(i):
        t, kk = seq[i]
        r = ring[i & 1]
        if t == 0:
            a(f"ds_read_b128 v[{r}:{r+3}], v5 offset:{KI + kk*512}")
        else:
            a(f"ds_read_b128 v[{r}:{r+3}], v0 offset:{KXI + ((t-1)*4+kk)*1024}")
    rd(0)
    for i in range(12):
        a(f"v_mov_b32 v{SA+i}, 0")
    for i in range(12):
        t, kk = seq[i]
        r = ring[i & 1]
        if i < 11:
            rd(i + 1)
            a("s_waitcnt lgkmcnt(1)")
        else:
            a("s_waitcnt lgkmcnt(0)")
        a(f"v_mfma_f32_16x16x32_bf16 v[{SA+t*4}:{SA+3+t*4}], v[{r}:{r+3}], v[{20+kk*4}:{23+kk*4}], v[{SA+t*4}:{SA+3+t*4}]")
    a("s_lshl_b32 s21, s20, 9")
    a("v_lshl_add_u32 v0, v1, 3, s21")
    a(f"ds_read_b64 v[48:49], v0 offset:{VI + 2048}")
    a("s_lshl_b32 s21, s20, 10")
    a("v_lshlrev_b32 v0, 6, v2")
    a("v_lshl_add_u32 v0, v3, 3, v0")
    a("v_add_u32 v0, s21, v0")
    a(f"ds_read_b64 v[60:61], v0 offset:{VXI}")
    a(f"ds_read_b64 v[62:63], v0 offset:{VXI+32}")
    a(f"ds_read_b64 v[52:53], v0 offset:{VXI+4096}")
    a(f"ds_read_b64 v[54:55], v0 offset:{VXI+4096+32}")
    a("s_nop 7")
    S = list(range(SA, SA + 12))
    round_scale(a, S, 20)
    a("v_mov_b32 v20, 0xff800000")
    for r in range(SA, SA + 4):
        a(f"v_cndmask_b32 v{r}, v20, v{r}, s[40:41]")
    softmax_regs(a, S, 21, 22, 23)
    for i in range(6):
        a(f"v_cvt_pk_bf16_f32 v{20+i}, v{SA+2*i}, v{SA+1+2*i}")
    for i in range(8):
        a(f"v_mov_b32 v{28+i}, 0")
    a("s_waitcnt lgkmcnt(0)")
    a("v_mfma_f32_16x16x16_bf16 v[28:31], v[18:19], v[20:21], v[28:31]")
    a("v_mfma_f32_16x16x16_bf16 v[32:35], v[48:49], v[20:21], v[32:35]")
    a("s_nop 7")
    a("v_mfma_f32_16x16x32_bf16 v[28:31], v[60:63], v[22:25], v[28:31]")
    a("v_mfma_f32_16x16x32_bf16 v[32:35], v[52:55], v[22:25], v[32:35]")
    a("s_nop 7\ns_nop 1")
    a("v_cvt_pk_bf16_f32 v20, v28, v29")
    a("v_cvt_pk_bf16_f32 v21, v30, v31")
    a("v_cvt_pk_bf16_f32 v22, v32, v33")
    a("v_cvt_pk_bf16_f32 v23, v34, v35")
    a(f"ds_write_b64 v6, v[20:21] offset:{OI}")
    a(f"ds_write_b64 v6, v[22:23] offset:{OI + 1024}")
    a("s_waitcnt lgkmcnt(0)")
    a.label(lsk3)
    stamp(a, 5, 4)
    items = [(j, kk) for j in range(4) for kk in range(4)]
    def rdw(i):
        j, kk = items[i]
        r = 36 + (i & 3) * 4
        a(f"ds_read_b128 v[{r}:{r+3}], v7 offset:{j*4096 + kk*1024}")
    for i in range(3):
        rdw(i)
    a("s_barrier")
    stamp(a, 6, 4)
    for kk in range(4):
        a(f"ds_read_b128 v[{20+kk*4}:{23+kk*4}], v5 offset:{OI + kk*512}")
    a("v_mov_b32 v0, v10")
    for i in range(16):
        j, kk = items[i]
        r = 36 + (i & 3) * 4
        acc = 52 if (j & 1) == 0 else 56
        if kk == 0:
            for t in range(4):
                a(f"v_mov_b32 v{acc+t}, 0")
        if i < 13:
            rdw(i + 3)
            a("s_waitcnt lgkmcnt(0)" if i == 0 else "s_waitcnt lgkmcnt(3)")
        else:
            a(f"s_waitcnt lgkmcnt({15-i})")
        a(f"v_mfma_f32_16x16x32_bf16 v[{acc}:{acc+3}], v[{r}:{r+3}], v[{20+kk*4}:{23+kk*4}], v[{acc}:{acc+3}]")
        if kk == 3:
            a("s_nop 7\ns_nop 1")
            for t in range(4):
                a(f"v_min_u32 v{acc+t}, -2, v{acc+t}")
            a(f"buffer_store_dwordx4 v[{acc}:{acc+3}], v0, s[8:11], s32 offen{S1}")
            a("v_add_u32 v0, 0x4000, v0")
    stamp(a, 7, 4)
    lg5 = a.newlabel("g5"); lb4 = a.newlabel("b4")
    a("s_cmp_ge_u32 s20, 4")
    a(f"s_cbranch_scc1 {lg5}")
    a("s_add_u32 s34, s34, 0x80000")
    a("s_add_u32 s35, s35, 64")
    a("s_add_u32 s21, s30, 1\ns_and_b32 s22, s21, 3\ns_cmp_lg_u32 s22, 0")
    lnk = a.newlabel("nk")
    a(f"s_cbranch_scc1 {lnk}")
    a(f"s_lshl_b32 s21, s21, 5\ns_lshl_b32 s22, s2, 2\ns_add_u32 s21, s21, s22\ns_add_u32 s21, s21, {hex(FKV)}")
    wait_flag(a, 21, 36)
    a.label(lnk)
    prefetch()
    a(f"s_branch {lb4}")
    a.label(lg5)
    lp = a.newlabel("p1"); ld0 = a.newlabel("p1a"); ld1 = a.newlabel("p1b"); lj = a.newlabel("p1j")
    def ld(b):
        for i in range(4):
            a(f"buffer_load_dwordx4 v[{20+b*16+i*4}:{23+b*16+i*4}], v11, s[8:11], s32 offen offset:{i*1024} sc1")
    a("s_mov_b32 s36, 0")
    ld(0)
    a.label(lp)
    ld(1)
    a("s_waitcnt vmcnt(4)")
    chk(a, list(range(20, 36)), 52)
    a(f"s_cbranch_scc1 {ld0}")
    ld(0)
    a("s_waitcnt vmcnt(4)")
    chk(a, list(range(36, 52)), 52)
    a(f"s_cbranch_scc1 {ld1}")
    a(f"s_add_u32 s36, s36, 1\ns_cmp_lt_u32 s36, {POLL_CAP}\ns_cbranch_scc1 {lp}\ns_branch {ld0}")
    for (lab, b) in ((ld1, 36), (ld0, 20)):
        a.label(lab)
        for i in range(4):
            a(f"v_add_f32 v{52+i}, v{b+i}, v{b+4+i}")
            a(f"v_add_f32 v{56+i}, v{b+8+i}, v{b+12+i}")
        for i in range(4):
            a(f"v_add_f32 v{52+i}, v{52+i}, v{56+i}")
        if lab == ld1:
            a(f"s_branch {lj}")
    a.label(lj)
    stamp(a, 8, 4)
    for i in range(4):
        a(f"v_mov_b32 v{56+i}, v{52+i}")
    a("s_nop 1")
    for i in range(4):
        a(f"v_permlane32_swap_b32 v{52+i}, v{56+i}")
    a("s_nop 1")
    for i in range(4):
        a(f"v_add_f32 v{52+i}, v{52+i}, v{56+i}")
    a("ds_write_b128 v12, v[52:55]")
    a("s_waitcnt lgkmcnt(0)")
    a.label(lb4)
    a("s_barrier")
    stamp(a, 9, 4)
    lnw = a.newlabel("nw")
    a("s_cmp_lg_u32 s20, 4")
    a(f"s_cbranch_scc1 {lnw}")
    a("v_lshlrev_b32 v0, 4, v1")
    for i in range(2):
        a(f"ds_read_b128 v[{52+i*4}:{55+i*4}], v0 offset:{RED + i*1024}")
    a("s_waitcnt lgkmcnt(0)")
    for i in range(4):
        a(f"v_add_f32 v{52+i}, v{52+i}, v{56+i}")
    for i in range(4):
        a(f"v_mov_b32 v{56+i}, v{52+i}")
    a("s_nop 1")
    for i in range(4):
        a(f"v_permlane32_swap_b32 v{52+i}, v{56+i}")
    a("s_nop 1")
    for i in range(4):
        a(f"v_add_f32 v{52+i}, v{52+i}, v{56+i}")
    a("v_cvt_pk_bf16_f32 v56, v52, v53")
    a("v_cvt_pk_bf16_f32 v57, v54, v55")
    a("v_min_u32 v56, -2, v56")
    a("v_min_u32 v57, -2, v57")
    a(f"buffer_store_dwordx2 v[56:57], v17, s[8:11], s31 offen{S1}")
    stamp(a, 10, 4)
    a.label(lnw)
    a(f"""
    s_add_u32 s30, s30, 1
    s_add_u32 s31, s31, 8192
    s_add_u32 s32, s32, 0x80000
    s_add_u32 s33, s33, 0x10000
    s_branch {lstep}
    """)
    a.label(llast)
    a("s_waitcnt vmcnt(0)")
    a("s_barrier")
    a("s_cmp_lg_u32 s20, 5")
    a(f"s_cbranch_scc1 {lend}")
    a(f"s_lshl_b32 s22, s2, 2\ns_add_u32 s21, s22, {hex(FR + 63*128)}")
    a("v_mov_b32 v36, s21\nv_mov_b32 v37, 1")
    a("s_mov_b64 exec, 1")
    a("buffer_store_dword v37, v36, s[8:11], 0 offen sc1")
    a(f"s_branch {lend}")

def gen_rec_role(a, lend):
    a("""
    v_and_b32 v2, 15, v1          ; m
    v_lshrrev_b32 v3, 4, v1       ; g
    v_and_b32 v18, 7, v1          ; m&7
    """)
    a(f"""
    s_getreg_b32 s21, hwreg(HW_REG_XCC_ID)
    s_add_u32 s21, s21, 1
    s_lshl_b32 s22, s2, 2
    s_add_u32 s22, s22, {hex(XT)}
    v_mov_b32 v20, s22
    v_mov_b32 v21, s21
    s_mov_b64 exec, 1
    buffer_store_dword v21, v20, s[8:11], 0 offen sc1
    s_mov_b64 exec, -1
    """)
    a("s_lshl_b32 s21, s2, 3\ns_add_u32 s21, s21, s20\ns_lshl_b32 s21, s21, 14")
    a("v_lshl_add_u32 v19, v1, 4, s21")
    for j in range(3):
        a(f"v_add_u32 v20, {hex(WQKV + j*4*MB)}, v19")
        for kk in range(16):
            if kk % 4 == 0 and kk:
                a("v_add_u32 v20, 0x1000, v20")
            r = 64 + j*64 + kk*4
            a(f"buffer_load_dwordx4 v[{r}:{r+3}], v20, s[8:11], 0 offen offset:{(kk%4)*1024}")
    a("s_lshl_b32 s21, s20, 19")
    a("s_lshl_b32 s22, s2, 12")
    a("s_add_u32 s21, s21, s22")
    a(f"s_add_u32 s21, s21, {hex(WO)}")
    a("v_lshl_add_u32 v20, v1, 4, s21")
    a("s_lshl_b32 s22, s20, 14")
    a(f"s_add_u32 s22, s22, {WOI}")
    a("v_lshl_add_u32 v21, v1, 4, s22")
    for j in range(4):
        for kk in range(4):
            a(f"buffer_load_dwordx4 v[{24+kk*4}:{27+kk*4}], v20, s[8:11], 0 offen offset:{kk*1024}")
        a("s_waitcnt vmcnt(0)")
        for kk in range(4):
            a(f"ds_write_b128 v21, v[{24+kk*4}:{27+kk*4}] offset:{j*4096 + kk*1024}")
        if j < 3:
            a(f"v_add_u32 v20, {hex(128*1024)}, v20")
        a("s_waitcnt lgkmcnt(0)")
    a(f"""
    v_lshlrev_b32 v5, 3, v3
    v_add_lshl_u32 v5, v5, v18, 4        ; (g*8+(m&7))*16
    v_add_u32 v4, {MEMI}, v5
    s_and_b32 s21, s20, 1
    s_lshl_b32 s21, s21, 1
    v_lshrrev_b32 v6, 1, v3
    v_add_u32 v6, s21, v6
    v_lshlrev_b32 v6, 7, v6
    v_lshl_add_u32 v6, v18, 4, v6
    v_and_b32 v19, 1, v3
    v_lshl_add_u32 v6, v19, 3, v6
    s_lshr_b32 s21, s20, 1
    s_lshl_b32 s21, s21, 9
    v_add_u32 v6, s21, v6
    s_lshl_b32 s21, s20, 14
    s_add_u32 s21, s21, {WOI}
    v_lshl_add_u32 v7, v1, 4, s21
    s_and_b32 s23, s20, 3
    s_lshl_b32 s21, s23, 11
    v_lshl_add_u32 v9, v1, 4, s21
    v_add_u32 v8, {hex(M2)}, v9
    v_add_u32 v9, {MEMI}, v9
    s_lshl_b32 s21, s20, 16               ; (4w)*16384
    s_lshl_b32 s22, s2, 9
    s_add_u32 s21, s21, s22
    s_add_u32 s21, s21, {hex(H1)}
    v_add_u32 v10, s21, v5
    s_lshl_b32 s21, s2, 14
    s_lshl_b32 s22, s23, 12
    s_add_u32 s21, s21, s22
    s_add_u32 s21, s21, {hex(H1)}
    v_lshl_add_u32 v11, v1, 4, s21
    v_and_b32 v19, 31, v1
    s_lshl_b32 s21, s23, 9
    s_add_u32 s21, s21, {RED}
    v_lshl_add_u32 v12, v19, 4, s21
    s_lshl_b32 s21, s2, 8
    s_lshl_b32 s22, s20, 5
    s_add_u32 s21, s21, s22               ; (h*128+16w)*2
    v_lshlrev_b32 v13, 13, v18
    v_lshl_add_u32 v13, v3, 3, v13
    v_add_u32 v13, s21, v13
    v_add_u32 v13, {hex(KM)}, v13
    s_lshl_b32 s22, s21, 3                ; (h*128+16w)*16
    v_lshl_add_u32 v14, v2, 4, s22
    v_and_b32 v19, 1, v3
    v_lshl_add_u32 v14, v19, 3, v14
    v_add_u32 v14, {hex(VMT)}, v14
    s_lshr_b32 s21, s20, 1
    s_lshl_b32 s21, s21, 4
    v_add_u32 v15, s21, v2
    v_lshlrev_b32 v15, 14, v15
    s_lshl_b32 s21, s2, 8
    s_and_b32 s22, s20, 1
    s_lshl_b32 s22, s22, 7
    s_add_u32 s21, s21, s22
    s_add_u32 s21, s21, {hex(QK + 8192)}
    v_lshl_add_u32 v15, v3, 4, v15
    v_add_u32 v15, s21, v15
    s_lshl_b32 s21, s2, 7
    s_lshl_b32 s22, s20, 4
    s_add_u32 s21, s21, s22
    v_lshrrev_b32 v16, 2, v1
    v_add_u32 v16, s21, v16
    v_lshlrev_b32 v16, 12, v16
    v_and_b32 v19, 3, v1
    v_lshl_add_u32 v16, v19, 4, v16
    v_add_u32 v16, {hex(VT)}, v16
    v_lshrrev_b32 v19, 4, v1
    v_and_b32 v19, 1, v19
    v_lshl_add_u32 v17, v19, 3, v18
    v_lshlrev_b32 v17, 4, v17
    v_lshrrev_b32 v19, 3, v1
    v_and_b32 v19, 1, v19
    v_lshl_add_u32 v17, v19, 3, v17
    s_lshl_b32 s21, s2, 8
    s_add_u32 s21, s21, {hex(M2 + 8192)}
    v_add_u32 v17, s21, v17
    v_cmp_gt_u32 s[40:41], 2, v3
    s_mov_b32 s30, 0
    s_mov_b32 s31, 0
    s_mov_b32 s32, 0
    s_mov_b32 s33, 0
    s_mov_b32 s34, 0
    s_mov_b32 s35, 0
    """)
    lp = a.newlabel("xc")
    a(f"""
    v_and_b32 v20, 31, v1
    v_lshlrev_b32 v20, 2, v20
    v_add_u32 v20, {hex(XT)}, v20
    s_mov_b32 s36, 0
    """)
    a.label(lp)
    a(f"""
    buffer_load_dword v21, v20, s[8:11], 0 offen sc1
    s_add_u32 s36, s36, 1
    s_waitcnt vmcnt(0)
    v_cmp_eq_u32 vcc, 0, v21
    s_cmp_lt_u32 s36, {POLL_CAP}
    s_cselect_b64 s[44:45], vcc, 0
    s_cmp_lg_u64 s[44:45], 0
    s_cbranch_scc1 {lp}
    v_readfirstlane_b32 s21, v21
    s_nop 3
    v_cmp_ne_u32 vcc, s21, v21
    s_cmp_lg_u64 vcc, 0
    """)
    lslow = a.newlabel("slow")
    if os.environ.get("FORCESLOW"):
        a(f"s_branch {lslow}")
    a(f"s_cbranch_scc1 {lslow}")
    rec_loop(a, True, lend)
    a.label(lslow)
    rec_loop(a, False, lend)

def worker_gemm(a, s_nt0, s_m0, flag_s):
    a(f"""
    s_and_b32 s25, s24, 1
    s_lshl_b32 s25, s25, 6
    s_add_u32 s21, s{s_m0}, s25
    s_lshr_b32 s25, s24, 1
    s_lshl_b32 s25, s25, 2
    s_add_u32 s22, s{s_nt0}, s25
    v_add_u32 v4, s21, v2
    v_lshlrev_b32 v4, 10, v4
    v_lshl_add_u32 v4, v3, 4, v4
    v_add_u32 v4, {hex(XN)}, v4
    """)
    for mt in range(4):
        a(f"v_add_u32 v{8+mt}, {mt*16*1024}, v4")
    a("s_lshl_b32 s25, s22, 14")
    a(f"s_add_u32 s25, s25, {hex(WQKV)}")
    a("v_lshl_add_u32 v4, v1, 4, s25")
    for nt in range(4):
        a(f"v_add_u32 v{12+nt}, {nt*16*1024}, v4")
    a("s_mov_b32 s26, 0\ns_mov_b32 s27, 0")
    XF, WF, ACC = 16, 48, 80
    lv = a.newlabel("wv"); ldn = a.newlabel("wdn")
    a("s_cmp_ge_u32 s22, 512")
    a(f"s_cbranch_scc1 {lv}")
    gemm_loop(a, 4, 4, 16, 8, True, [8,9,10,11], [12,13,14,15], XF, WF, ACC, 26, 27, 28)
    a("""
    v_add_u32 v4, s21, v2
    v_lshlrev_b32 v4, 14, v4
    s_lshl_b32 s25, s22, 5
    v_lshl_add_u32 v4, v3, 3, v4
    v_add_u32 v4, s25, v4
    """)
    a(f"v_add_u32 v4, {hex(QK)}, v4")
    for mt in range(4):
        for nt in range(4):
            c = ACC + (nt * 4 + mt) * 4
            a(f"v_cvt_pk_bf16_f32 v{16+(nt&1)*2}, v{c}, v{c+1}")
            a(f"v_cvt_pk_bf16_f32 v{17+(nt&1)*2}, v{c+2}, v{c+3}")
            a(f"buffer_store_dwordx2 v[{16+(nt&1)*2}:{17+(nt&1)*2}], v4, s[8:11], 0 offen offset:{nt*32} sc1")
            a("s_nop 1")
        if mt < 3:
            a(f"v_add_u32 v4, {hex(16*16384)}, v4")
    a(f"s_branch {ldn}")
    a.label(lv)
    gemm_loop(a, 4, 4, 16, 8, False, [8,9,10,11], [12,13,14,15], XF, WF, ACC, 26, 27, 28)
    a("""
    s_sub_u32 s25, s22, 512
    s_lshl_b32 s25, s25, 4
    v_add_u32 v4, s25, v2
    v_lshlrev_b32 v4, 12, v4
    s_lshl_b32 s25, s21, 1
    v_lshl_add_u32 v4, v3, 3, v4
    v_add_u32 v4, s25, v4
    """)
    a(f"v_add_u32 v4, {hex(VT)}, v4")
    for nt in range(4):
        for mt in range(4):
            c = ACC + (nt * 4 + mt) * 4
            a(f"v_cvt_pk_bf16_f32 v{16+(mt&1)*2}, v{c}, v{c+1}")
            a(f"v_cvt_pk_bf16_f32 v{17+(mt&1)*2}, v{c+2}, v{c+3}")
            a(f"buffer_store_dwordx2 v[{16+(mt&1)*2}:{17+(mt&1)*2}], v4, s[8:11], 0 offen offset:{mt*32} sc1")
            a("s_nop 1")
        if nt < 3:
            a(f"v_add_u32 v4, {hex(16*4096)}, v4")
    a.label(ldn)

def worker_attn(a):
    a(f"""
    v_and_b32 v4, 7, v1
    s_lshl_b32 s24, s23, 19
    s_lshl_b32 s25, s22, 8
    s_add_u32 s24, s24, s25
    s_add_u32 s24, s24, {hex(QK)}
    v_lshlrev_b32 v5, 14, v2
    v_lshl_add_u32 v5, v3, 4, v5
    v_add_u32 v5, s24, v5
    v_add_u32 v6, {hex(16*16384)}, v5
    s_lshl_b32 s24, s23, 16
    s_add_u32 s24, s24, s25
    s_add_u32 s24, s24, {hex(KM)}
    v_lshlrev_b32 v7, 13, v4
    v_lshl_add_u32 v7, v3, 4, v7
    v_add_u32 v7, s24, v7
    """)
    for tt in range(2):
        for kk in range(4):
            r = 16 + (tt*4+kk)*4
            a(f"buffer_load_dwordx4 v[{r}:{r+3}], v{5+tt}, s[8:11], 0 offen offset:{kk*64} sc1")
    for kk in range(4):
        r = 48 + kk*4
        a(f"buffer_load_dwordx4 v[{r}:{r+3}], v7, s[8:11], 0 offen offset:{kk*64} sc1")
    a("v_add_u32 v8, 0x2000, v5\nv_add_u32 v9, 0x2000, v6")
    for t in range(1, 3):
        for kk in range(4):
            r = 48 + (t*4+kk)*4
            a(f"buffer_load_dwordx4 v[{r}:{r+3}], v{7+t}, s[8:11], 0 offen offset:{kk*64} sc1")
    ACC = 96
    for i in range(24):
        a(f"v_mov_b32 v{ACC+i}, 0")
    a("s_waitcnt vmcnt(0)")
    for t in range(3):
        for tt in range(2):
            for kk in range(4):
                c = ACC + (t*2+tt)*4
                a(f"v_mfma_f32_16x16x32_bf16 v[{c}:{c+3}], v[{48+(t*4+kk)*4}:{51+(t*4+kk)*4}], v[{16+(tt*4+kk)*4}:{19+(tt*4+kk)*4}], v[{c}:{c+3}]")
    a("s_nop 7\ns_nop 1")
    a(f"""
    s_lshl_b32 s24, s23, 16
    s_lshl_b32 s25, s22, 11
    s_add_u32 s24, s24, s25
    s_add_u32 s24, s24, {hex(VMT)}
    v_and_b32 v10, 1, v3
    v_lshlrev_b32 v10, 3, v10
    v_lshl_add_u32 v10, v2, 4, v10
    v_add_u32 v10, s24, v10
    s_lshl_b32 s24, s22, 19
    s_lshl_b32 s25, s23, 6
    s_add_u32 s24, s24, s25
    s_add_u32 s24, s24, {hex(VT)}
    v_lshlrev_b32 v11, 12, v2
    v_lshl_add_u32 v11, v3, 3, v11
    v_add_u32 v11, s24, v11
    """)
    for et in range(8):
        r = 16 + et*6
        a(f"buffer_load_dwordx2 v[{r}:{r+1}], v10, s[8:11], 0 offen offset:{et*256} sc1")
        a(f"buffer_load_dwordx2 v[{r+2}:{r+3}], v11, s[8:11], 0 offen sc1")
        a(f"buffer_load_dwordx2 v[{r+4}:{r+5}], v11, s[8:11], 0 offen offset:32 sc1")
        if et < 7:
            a("v_add_u32 v11, 0x10000, v11")
    a("v_lshlrev_b32 v12, 2, v3")
    a("v_sub_u32 v12, v2, v12")
    a("v_cmp_gt_u32 s[40:41], 2, v3")
    a("v_mov_b32 v13, 0xff800000")
    P = 64
    for tt in range(2):
        S = [ACC + (t*2+tt)*4 + r for t in range(3) for r in range(4)]
        round_scale(a, S, 14)
        for r in range(4):
            a(f"v_cndmask_b32 v{S[r]}, v13, v{S[r]}, s[40:41]")
        for t in range(1, 3):
            for r in range(4):
                cst = (t-1)*16 + r - tt*16
                a(f"v_cmp_le_i32 vcc, {cst}, v12")
                a("s_nop 1")
                a(f"v_cndmask_b32 v{S[t*4+r]}, v13, v{S[t*4+r]}, vcc")
        softmax_regs(a, S, 14, 15, 90)
        for i in range(6):
            a(f"v_cvt_pk_bf16_f32 v{P+tt*6+i}, v{S[2*i]}, v{S[2*i+1]}")
    a(f"""
    s_lshl_b32 s24, s23, 18
    s_lshl_b32 s25, s22, 8
    s_add_u32 s24, s24, s25
    s_add_u32 s24, s24, {hex(OB)}
    v_lshlrev_b32 v12, 13, v2
    v_lshl_add_u32 v12, v3, 3, v12
    v_add_u32 v12, s24, v12
    v_add_u32 v13, {hex(16*8192)}, v12
    s_waitcnt vmcnt(0)
    """)
    OA = 80
    for et in range(8):
        r = 16 + et*6
        for tt in range(2):
            c = OA + tt*4
            for i in range(4):
                a(f"v_mov_b32 v{c+i}, 0")
            a("s_nop 1")
            a(f"v_mfma_f32_16x16x16_bf16 v[{c}:{c+3}], v[{r}:{r+1}], v[{P+tt*6}:{P+tt*6+1}], v[{c}:{c+3}]")
            a("s_nop 7")
            a(f"v_mfma_f32_16x16x32_bf16 v[{c}:{c+3}], v[{r+2}:{r+5}], v[{P+tt*6+2}:{P+tt*6+5}], v[{c}:{c+3}]")
        a("s_nop 7\ns_nop 1")
        for tt in range(2):
            c = OA + tt*4
            a(f"v_cvt_pk_bf16_f32 v{88+tt*2}, v{c}, v{c+1}")
            a(f"v_cvt_pk_bf16_f32 v{89+tt*2}, v{c+2}, v{c+3}")
            a(f"buffer_store_dwordx2 v[{88+tt*2}:{89+tt*2}], v{12+tt}, s[8:11], 0 offen offset:{et*32}")
        a("s_nop 1")

NW = 224
def gen_worker_role(a, lend):
    a("""
    v_and_b32 v2, 15, v1
    v_lshrrev_b32 v3, 4, v1
    s_and_b32 s24, s20, 3
    s_lshr_b32 s42, s20, 2         ; half
    s_mov_b32 s43, s29
    """)
    lt = a.newlabel("gt"); lq = a.newlabel("gq"); lgo = a.newlabel("ggo"); ldone = a.newlabel("gdone")
    a.label(lt)
    a("s_cmp_ge_u32 s43, 768")
    a(f"s_cbranch_scc1 {ldone}")
    a("s_cmp_ge_u32 s43, 512")
    a(f"s_cbranch_scc1 {lq}")
    a(f"""
    s_lshr_b32 s44, s43, 5         ; mb
    s_and_b32 s45, s43, 31         ; h
    s_lshl_b32 s46, s45, 3         ; h*8 tiles
    s_lshl_b32 s47, s42, 8         ; half*256 : k -> 256.., v -> 512..
    s_add_u32 s46, s46, s47
    s_add_u32 s46, s46, 256        ; nt0
    s_lshl_b32 s47, s44, 7         ; m0
    s_lshl_b32 s48, s43, 2
    s_add_u32 s48, s48, {hex(FKV)}
    s_branch {lgo}
    """)
    a.label(lq)
    a(f"""
    s_sub_u32 s45, s43, 512
    s_lshr_b32 s44, s45, 4         ; mb
    s_and_b32 s45, s45, 15
    s_lshl_b32 s45, s45, 1
    s_add_u32 s45, s45, s42        ; h
    s_lshl_b32 s46, s45, 3         ; nt0
    s_lshl_b32 s47, s44, 7
    s_lshl_b32 s48, s44, 5
    s_add_u32 s48, s48, s45
    s_lshl_b32 s48, s48, 2
    s_add_u32 s48, s48, {hex(FQ)}
    """)
    a.label(lgo)
    worker_gemm(a, 46, 47, 48)
    a("s_waitcnt vmcnt(0)")
    a("s_barrier")
    lnf = a.newlabel("gnf")
    a("s_cmp_lg_u32 s24, 0")
    a(f"s_cbranch_scc1 {lnf}")
    a("s_cmp_ge_u32 s43, 512")
    lyes = a.newlabel("gy")
    a(f"s_cbranch_scc1 {lyes}")
    a("s_cmp_lg_u32 s42, 0")
    a(f"s_cbranch_scc1 {lnf}")
    a.label(lyes)
    a("v_mov_b32 v4, s48\nv_mov_b32 v5, 1")
    a("s_mov_b64 exec, 1")
    a("buffer_store_dword v5, v4, s[8:11], 0 offen sc1")
    a("s_mov_b64 exec, -1")
    a.label(lnf)
    a(f"s_add_u32 s43, s43, {NW}")
    a(f"s_branch {lt}")
    a.label(ldone)
    a("s_mov_b32 s43, s29")
    la = a.newlabel("at")
    a.label(la)
    a("s_cmp_ge_u32 s43, 256")
    a(f"s_cbranch_scc1 {lend}")
    a(f"""
    s_lshr_b32 s23, s43, 2
    s_and_b32 s22, s43, 3
    s_lshl_b32 s22, s22, 3
    s_add_u32 s22, s22, s20
    s_lshl_b32 s21, s23, 5
    s_add_u32 s21, s21, s22
    s_lshl_b32 s21, s21, 2
    s_add_u32 s21, s21, {hex(FR)}
    """)
    wait_flag(a, 21, 16)
    a(f"""
    s_lshr_b32 s21, s23, 2
    s_lshl_b32 s21, s21, 5
    s_add_u32 s21, s21, s22
    s_lshl_b32 s21, s21, 2
    s_add_u32 s44, s21, {hex(FQ)}
    s_add_u32 s21, s21, {hex(FKV)}
    """)
    wait_flag(a, 21, 16)
    wait_flag(a, 44, 16)
    worker_attn(a)
    a(f"s_add_u32 s43, s43, {NW}")
    a(f"s_branch {la}")

def gen_mega(a):
    name = "mega_kernel"
    kernel_header(a, name)
    lend = a.newlabel("mend")
    lwk = a.newlabel("mwk")
    a(f"""
    s_cmp_ge_u32 s2, 256
    s_cbranch_scc1 {lend}
    s_load_dwordx2 s[4:5], s[0:1], {KA_WS}
    v_and_b32 v1, 63, v0
    v_lshrrev_b32 v2, 6, v0
    s_nop 0
    v_readfirstlane_b32 s20, v2
    s_waitcnt lgkmcnt(0)
    """)
    srd(a, 8, 4, WS_BYTES)
    a(f"""
    s_and_b32 s3, s2, 7
    s_lshr_b32 s21, s2, 3
    s_cmp_lg_u32 s3, 0
    s_cbranch_scc1 {lwk}
    s_mov_b32 s2, s21
    """)
    gen_rec_role(a, lend)
    a.label(lwk)
    a("s_mul_i32 s29, s21, 7\ns_add_u32 s29, s29, s3\ns_sub_u32 s29, s29, 1")
    gen_worker_role(a, lend)
    a.label(lend)
    a("s_endpgm")
    return kernel_desc(name, 256)
```

```python
import sys

NAME = "sequential_preLN__memory_aug_recurrent_mem_tr__glu_gated_bilinear__prompt"

MB = 1 << 20
XN   = 0
WQKV = 2 * MB
WO   = 14 * MB
WG   = 18 * MB
WU   = 20 * MB
WD   = 22 * MB
QK   = 24 * MB
VT   = 56 * MB
KM   = 72 * MB
VMT  = 76 * MB
OB   = 80 * MB
HB   = 96 * MB
HN   = 98 * MB
HH   = 100 * MB
M2   = 112 * MB
H1   = 128 * MB
WS_BYTES = 256 * MB

KA_X, KA_MEM0, KA_WQ, KA_WK, KA_WV, KA_WO, KA_SEG, KA_BX, KA_WG, KA_WU, KA_WD, KA_OUT, KA_DBG, KA_WS = [8*i for i in range(14)]

class Asm:
    def __init__(self):
        self.lines = []
        self.lbl = 0
    def __call__(self, s):
        for ln in s.strip("\n").split("\n"):
            self.lines.append("    " + ln.strip())
    def label(self, s):
        self.lines.append(s + ":")
    def newlabel(self, p="L"):
        self.lbl += 1
        return f".{p}{self.lbl}"
    def text(self):
        return "\n".join(self.lines) + "\n"

def srd(a, d, base_lo, nbytes):
    a(f"s_mov_b32 s{d}, s{base_lo}")
    a(f"s_and_b32 s{d+1}, s{base_lo+1}, 0xffff")
    a(f"s_mov_b32 s{d+2}, {hex(nbytes)}")
    a(f"s_mov_b32 s{d+3}, 0x00020000")

def kernel_header(a, name):
    a.lines.append(f".globl {name}")
    a.lines.append(".p2align 8")
    a.lines.append(f".type {name},@function")
    a.label(name)

def kernel_desc(name, vgpr, sgpr=102):
    acc = (vgpr + 3) // 4 * 4
    return f""".p2align 6
.amdhsa_kernel {name}
  .amdhsa_next_free_vgpr {vgpr}
  .amdhsa_next_free_sgpr {sgpr}
  .amdhsa_accum_offset {acc}
  .amdhsa_group_segment_fixed_size 0
  .amdhsa_kernarg_size 112
  .amdhsa_user_sgpr_count 2
  .amdhsa_user_sgpr_kernarg_segment_ptr 1
  .amdhsa_system_sgpr_workgroup_id_x 1
.end_amdhsa_kernel
"""

def allreduce16(a, op, r, t):
    for sh in (8, 4, 2, 1):
        a(f"s_nop 1")
        a(f"{op}_dpp v{t}, v{r}, v{r} row_ror:{sh} row_mask:0xf bank_mask:0xf")
        a(f"s_nop 1")
        a(f"v_mov_b32 v{r}, v{t}")

def allreduce_groups(a, op, r, t):
    a(f"v_mov_b32 v{t}, v{r}")
    a("s_nop 1")
    a(f"v_permlane16_swap_b32 v{r}, v{t}")
    a("s_nop 1")
    a(f"{op} v{r}, v{r}, v{t}")
    a(f"v_mov_b32 v{t}, v{r}")
    a("s_nop 1")
    a(f"v_permlane32_swap_b32 v{r}, v{t}")
    a("s_nop 1")
    a(f"{op} v{r}, v{r}, v{t}")

def emit_ln_row(a, s_src, src_off, s_dst, dst_off, vrow):
    a(f"""
    v_lshlrev_b32 v2, 10, v{vrow}
    v_lshl_add_u32 v2, v1, 4, v2
    v_add_u32 v3, {hex(src_off)}, v2
    buffer_load_dwordx4 v[8:11], v3, s[{s_src}:{s_src+3}], 0 offen
    s_waitcnt vmcnt(0)
    """)
    for i in range(4):
        a(f"v_lshlrev_b32 v{12+2*i}, 16, v{8+i}")
        a(f"v_and_b32 v{13+2*i}, 0xffff0000, v{8+i}")
    a("v_add_f32 v20, v12, v13")
    for i in range(2, 8):
        a(f"v_add_f32 v20, v20, v{12+i}")
    allreduce16(a, "v_add_f32", 20, 21)
    allreduce_groups(a, "v_add_f32", 20, 21)
    a("v_mul_f32 v20, 0x3b000000, v20")
    for i in range(8):
        a(f"v_sub_f32 v{22+i}, v{12+i}, v20")
    a("v_mul_f32 v30, v22, v22")
    for i in range(1, 8):
        a(f"v_fmac_f32 v30, v{22+i}, v{22+i}")
    allreduce16(a, "v_add_f32", 30, 21)
    allreduce_groups(a, "v_add_f32", 30, 21)
    a("v_mul_f32 v30, 0x3b000000, v30")
    a("v_cvt_pk_bf16_f32 v31, v20, v30")
    a("v_lshlrev_b32 v20, 16, v31")
    a("v_and_b32 v30, 0xffff0000, v31")
    a("v_add_f32 v30, 0x3727c5ac, v30")
    a("v_cvt_pk_bf16_f32 v31, v30, v30")
    a("v_and_b32 v30, 0xffff0000, v31")
    a("v_sqrt_f32 v30, v30")
    a("s_nop 0")
    a("v_cvt_pk_bf16_f32 v31, v30, v30")
    a("v_and_b32 v30, 0xffff0000, v31")
    a("v_rcp_f32 v30, v30")
    a("s_nop 0")
    for i in range(8):
        a(f"v_sub_f32 v{22+i}, v{12+i}, v20")
    for i in range(4):
        a(f"v_cvt_pk_bf16_f32 v{8+i}, v{22+2*i}, v{23+2*i}")
    for i in range(4):
        a(f"v_lshlrev_b32 v{12+2*i}, 16, v{8+i}")
        a(f"v_and_b32 v{13+2*i}, 0xffff0000, v{8+i}")
    for i in range(8):
        a(f"v_mul_f32 v{12+i}, v{12+i}, v30")
    for i in range(4):
        a(f"v_cvt_pk_bf16_f32 v{8+i}, v{12+2*i}, v{13+2*i}")
    a(f"v_add_u32 v3, {hex(dst_off)}, v2")
    a(f"buffer_store_dwordx4 v[8:11], v3, s[{s_dst}:{s_dst+3}], 0 offen")

N_LN = 512
REPACK = [
    (KA_WQ, 512, 4096, WQKV + 0 * 4 * MB, 'nk'),
    (KA_WK, 512, 4096, WQKV + 1 * 4 * MB, 'nk'),
    (KA_WV, 512, 4096, WQKV + 2 * 4 * MB, 'nk'),
    (KA_WO, 4096, 512, WO, 'nk'),
    (KA_WG, 512, 1792, WG, 'nk'),
    (KA_WU, 512, 1792, WU, 'nk'),
    (KA_WD, 1792, 512, WD, 'kn'),
]
FILL_BYTES = 32 * MB + 64 * 8192
N_FILL = (32 * MB) // (256 * 64) + (64 * 8192) // (256 * 64)

def prep_grid():
    return N_LN + sum(K * N // 8 // 256 for _, K, N, _, _ in REPACK) + N_FILL + 4

def gen_prep(a):
    name = "prep_kernel"
    kernel_header(a, name)
    a(f"""
    s_load_dwordx2 s[4:5], s[0:1], {KA_WS}
    s_load_dwordx2 s[6:7], s[0:1], {KA_X}
    v_and_b32 v1, 63, v0
    v_lshrrev_b32 v4, 6, v0
    s_waitcnt lgkmcnt(0)
    """)
    srd(a, 8, 4, WS_BYTES)
    srd(a, 12, 6, 2 * MB)
    lnext = a.newlabel()
    a(f"s_cmp_ge_u32 s2, {N_LN}")
    a(f"s_cbranch_scc1 {lnext}")
    a("s_lshl_b32 s3, s2, 2")
    a("v_add_u32 v4, s3, v4")
    emit_ln_row(a, 12, 0, 8, XN, 4)
    a("s_endpgm")
    a.label(lnext)
    base = N_LN
    for (ka, K, N, dst, order) in REPACK:
        nwg = K * N // 8 // 256
        lnext = a.newlabel()
        a(f"s_cmp_ge_u32 s2, {base + nwg}")
        a(f"s_cbranch_scc1 {lnext}")
        a(f"s_load_dwordx2 s[6:7], s[0:1], {ka}")
        a(f"s_sub_u32 s3, s2, {base}")
        a("s_lshl_b32 s3, s3, 8")
        a("v_add_u32 v2, s3, v0")
        a("s_waitcnt lgkmcnt(0)")
        srd(a, 16, 6, K * N * 2)
        KK, NT = K // 32, N // 16
        a("v_lshrrev_b32 v3, 6, v2")
        if order == 'nk':
            sh = KK.bit_length() - 1
            assert 1 << sh == KK
            a(f"v_and_b32 v5, {KK-1}, v3")
            a(f"v_lshrrev_b32 v6, {sh}, v3")
        else:
            sh = NT.bit_length() - 1
            assert 1 << sh == NT
            a(f"v_and_b32 v6, {NT-1}, v3")
            a(f"v_lshrrev_b32 v5, {sh}, v3")
        a("v_and_b32 v7, 15, v1")
        a("v_lshl_add_u32 v6, v6, 4, v7")
        a("v_lshrrev_b32 v7, 4, v1")
        a("v_lshlrev_b32 v7, 3, v7")
        a("v_lshl_add_u32 v5, v5, 5, v7")
        a(f"s_mov_b32 s3, {N*2}")
        a("v_mul_lo_u32 v5, v5, s3")
        a("v_lshl_add_u32 v5, v6, 1, v5")
        for i in range(8):
            a(f"buffer_load_ushort v{8+i}, v5, s[16:19], 0 offen")
            if i < 7:
                a(f"v_add_u32 v5, {N*2}, v5")
        a("s_waitcnt vmcnt(0)")
        for i in range(4):
            a(f"v_lshl_or_b32 v{16+i}, v{9+2*i}, 16, v{8+2*i}")
        a("v_lshlrev_b32 v2, 4, v2")
        a(f"v_add_u32 v2, {hex(dst)}, v2")
        a("buffer_store_dwordx4 v[16:19], v2, s[8:11], 0 offen")
        a("s_endpgm")
        a.label(lnext)
        base += nwg
    lnext = a.newlabel()
    a(f"s_cmp_ge_u32 s2, {base + N_FILL}")
    a(f"s_cbranch_scc1 {lnext}")
    a(f"s_sub_u32 s3, s2, {base}")
    nh1 = (32 * MB) // (256 * 64)
    a("s_lshl_b32 s3, s3, 14")
    a(f"s_cmp_ge_u32 s3, {hex(32*MB)}")
    a(f"s_mov_b32 s17, {hex(H1)}")
    a(f"s_cselect_b32 s16, {hex(M2 + 8192 - 32*MB)}, s17")
    a("s_add_u32 s3, s3, s16")
    a("v_lshl_add_u32 v2, v0, 4, s3")
    a("v_mov_b32 v8, -1\nv_mov_b32 v9, -1\nv_mov_b32 v10, -1\nv_mov_b32 v11, -1")
    for i in range(4):
        a(f"buffer_store_dwordx4 v[8:11], v2, s[8:11], 0 offen offset:0")
        if i < 3:
            a("v_add_u32 v2, 0x1000, v2")
    a("s_endpgm")
    a.label(lnext)
    base += N_FILL
    lend = a.newlabel()
    a(f"s_cmp_ge_u32 s2, {base + 2}")
    a(f"s_cbranch_scc1 {lend}")
    a(f"s_load_dwordx2 s[6:7], s[0:1], {KA_MEM0}")
    a(f"s_sub_u32 s3, s2, {base}")
    a("s_lshl_b32 s3, s3, 8")
    a("v_add_u32 v2, s3, v0")
    a("s_waitcnt lgkmcnt(0)")
    srd(a, 16, 6, 8192)
    a("v_and_b32 v3, 7, v2")
    a("v_lshrrev_b32 v5, 3, v2")
    a("v_lshlrev_b32 v3, 10, v3")
    a("v_lshl_add_u32 v3, v5, 4, v3")
    a("buffer_load_dwordx4 v[8:11], v3, s[16:19], 0 offen")
    a("v_lshlrev_b32 v2, 4, v2")
    a(f"v_add_u32 v2, {hex(M2)}, v2")
    a("s_waitcnt vmcnt(0)")
    for i in range(4):
        a(f"v_min_u32 v{8+i}, -2, v{8+i}")
    a("buffer_store_dwordx4 v[8:11], v2, s[8:11], 0 offen")
    a("s_endpgm")
    a.label(lend)
    lend2 = a.newlabel()
    a(f"s_cmp_ge_u32 s2, {base + 4}")
    a(f"s_cbranch_scc1 {lend2}")
    a(f"s_sub_u32 s3, s2, {base + 2}")
    a("s_lshl_b32 s3, s3, 14")
    a(f"s_add_u32 s3, s3, {hex(113*MB)}")
    a("v_lshl_add_u32 v2, v0, 4, s3")
    a("v_mov_b32 v8, 0\nv_mov_b32 v9, 0\nv_mov_b32 v10, 0\nv_mov_b32 v11, 0")
    for i in range(4):
        a("buffer_store_dwordx4 v[8:11], v2, s[8:11], 0 offen")
        if i < 3:
            a("v_add_u32 v2, 0x1000, v2")
    a.label(lend2)
    a("s_endpgm")
    return kernel_desc(name, 48)

def gemm_loop(a, MT, NTL, KKN, s_ws, transposed, vX, vW, XF, WF, ACC, sKX, sKW, sCnt, wstride=1024, nW=1):
    nX, nWt = MT, NTL
    def loads(st):
        for nt in range(nWt):
            r = WF + (st * nWt + nt) * 4
            a(f"buffer_load_dwordx4 v[{r}:{r+3}], v{vW[nt]}, s[{s_ws}:{s_ws+3}], s{sKW} offen")
        for mt in range(nX):
            r = XF + (st * nX + mt) * 4
            a(f"buffer_load_dwordx4 v[{r}:{r+3}], v{vX[mt]}, s[{s_ws}:{s_ws+3}], s{sKX} offen")
        a(f"s_add_u32 s{sKX}, s{sKX}, 64")
        a(f"s_add_u32 s{sKW}, s{sKW}, {wstride}")
    def mfmas(st):
        for nt in range(nWt):
            for mt in range(nX):
                c = ACC + (nt * nX + mt) * 4
                w = WF + (st * nWt + nt) * 4
                x = XF + (st * nX + mt) * 4
                if transposed:
                    a(f"v_mfma_f32_16x16x32_bf16 v[{c}:{c+3}], v[{w}:{w+3}], v[{x}:{x+3}], v[{c}:{c+3}]")
                else:
                    a(f"v_mfma_f32_16x16x32_bf16 v[{c}:{c+3}], v[{x}:{x+3}], v[{w}:{w+3}], v[{c}:{c+3}]")
    for i in range(nWt * nX * 4):
        a(f"v_mov_b32 v{ACC+i}, 0")
    loads(0)
    a(f"s_mov_b32 s{sCnt}, {KKN//2}")
    lp = a.newlabel("gl")
    a.label(lp)
    loads(1)
    a(f"s_waitcnt vmcnt({nX+nWt})")
    mfmas(0)
    loads(0)
    a(f"s_waitcnt vmcnt({nX+nWt})")
    mfmas(1)
    a(f"s_sub_u32 s{sCnt}, s{sCnt}, 1")
    a(f"s_cmp_lg_u32 s{sCnt}, 0")
    a(f"s_cbranch_scc1 {lp}")
    a("s_waitcnt vmcnt(0)")
    a("s_nop 7\ns_nop 7")

def gen_gemm1(a):
    name = "gemm1_kernel"
    kernel_header(a, name)
    lend = a.newlabel()
    a(f"""
    s_cmp_ge_u32 s2, 1536
    s_cbranch_scc1 {lend}
    s_load_dwordx2 s[4:5], s[0:1], {KA_WS}
    v_and_b32 v1, 63, v0
    v_lshrrev_b32 v2, 6, v0
    s_nop 0
    v_readfirstlane_b32 s20, v2
    s_waitcnt lgkmcnt(0)
    """)
    srd(a, 8, 4, WS_BYTES)
    a("""
    s_and_b32 s21, s2, 15
    s_lshr_b32 s22, s2, 4
    s_and_b32 s23, s20, 1
    s_lshr_b32 s24, s20, 1
    s_lshl_b32 s21, s21, 7
    s_lshl_b32 s23, s23, 6
    s_add_u32 s21, s21, s23            ; m0
    s_lshl_b32 s22, s22, 3
    s_lshl_b32 s24, s24, 2
    s_add_u32 s22, s22, s24
    v_and_b32 v2, 15, v1
    v_lshrrev_b32 v3, 4, v1
    v_add_u32 v4, s21, v2
    v_lshlrev_b32 v4, 10, v4
    v_lshl_add_u32 v4, v3, 4, v4
    """)
    a(f"v_add_u32 v4, {hex(XN)}, v4")
    for mt in range(4):
        a(f"v_add_u32 v{8+mt}, {mt*16*1024}, v4")
    a("s_lshl_b32 s25, s22, 14")
    a(f"s_add_u32 s25, s25, {hex(WQKV)}")
    a("v_lshl_add_u32 v4, v1, 4, s25")
    for nt in range(4):
        a(f"v_add_u32 v{12+nt}, {nt*16*1024}, v4")
    a("s_mov_b32 s26, 0\ns_mov_b32 s27, 0")
    XF, WF, ACC = 16, 48, 80
    lv = a.newlabel()
    a("s_cmp_ge_u32 s22, 512")
    a(f"s_cbranch_scc1 {lv}")
    gemm_loop(a, 4, 4, 16, 8, True, [8,9,10,11], [12,13,14,15], XF, WF, ACC, 26, 27, 28)
    a("""
    v_add_u32 v4, s21, v2
    v_lshlrev_b32 v4, 14, v4
    s_lshl_b32 s25, s22, 5
    v_lshl_add_u32 v4, v3, 3, v4
    v_add_u32 v4, s25, v4
    """)
    a(f"v_add_u32 v4, {hex(QK)}, v4")
    for mt in range(4):
        for nt in range(4):
            c = ACC + (nt * 4 + mt) * 4
            a(f"v_cvt_pk_bf16_f32 v{16+(nt&1)*2}, v{c}, v{c+1}")
            a(f"v_cvt_pk_bf16_f32 v{17+(nt&1)*2}, v{c+2}, v{c+3}")
            a(f"buffer_store_dwordx2 v[{16+(nt&1)*2}:{17+(nt&1)*2}], v4, s[8:11], 0 offen offset:{nt*32}")
            a("s_nop 1")
        if mt < 3:
            a(f"v_add_u32 v4, {hex(16*16384)}, v4")
    a("s_endpgm")
    a.label(lv)
    gemm_loop(a, 4, 4, 16, 8, False, [8,9,10,11], [12,13,14,15], XF, WF, ACC, 26, 27, 28)
    a("""
    s_sub_u32 s25, s22, 512
    s_lshl_b32 s25, s25, 4
    v_add_u32 v4, s25, v2
    v_lshlrev_b32 v4, 12, v4
    s_lshl_b32 s25, s21, 1
    v_lshl_add_u32 v4, v3, 3, v4
    v_add_u32 v4, s25, v4
    """)
    a(f"v_add_u32 v4, {hex(VT)}, v4")
    for nt in range(4):
        for mt in range(4):
            c = ACC + (nt * 4 + mt) * 4
            a(f"v_cvt_pk_bf16_f32 v{16+(mt&1)*2}, v{c}, v{c+1}")
            a(f"v_cvt_pk_bf16_f32 v{17+(mt&1)*2}, v{c+2}, v{c+3}")
            a(f"buffer_store_dwordx2 v[{16+(mt&1)*2}:{17+(mt&1)*2}], v4, s[8:11], 0 offen offset:{mt*32}")
            a("s_nop 1")
        if nt < 3:
            a(f"v_add_u32 v4, {hex(16*4096)}, v4")
    a.label(lend)
    a("s_endpgm")
    return kernel_desc(name, 144)

KERNELS = []
def build():
    a = Asm()
    descs = []
    launches = []
    descs.append(gen_prep(a));  launches.append(("prep_kernel", prep_grid(), 256, 0))
    import gen2, gen3
    descs.append(gen3.gen_mega(a)); launches.append(("mega_kernel", 256, 512, gen3.MEGA_LDS))
    gen2.add_tail(a, descs, launches)
    hdr = "".join(f"; @launch kernel={k} grid=({g},1,1) block=({b},1,1) lds={l}\n" for k, g, b, l in launches)
    out = hdr + '.amdgcn_target "amdgcn-amd-amdhsa--gfx950"\n.text\n' + a.text()
    out += '.section .rodata,"a"\n' + "".join(descs)
    return out

if __name__ == "__main__":
    sys.path.insert(0, "gen")
    txt = build()
    open(f"cdna_kernels/{NAME}.s", "w").write(txt)
    print("written", len(txt))
```

```python
from gen import *
import gen, os
from gen2 import round_scale, softmax_regs, SCALE, LOG2E, POLL_CAP, DBGW

STAMP = bool(os.environ.get("STAMP"))
FL = 113 * MB
FKV, FQ, FR, XT = FL, FL + 4096, FL + 8192, FL + 24576
FA, FH, FF = FL + 16384, FL + 17408, FL + 18432
FL_BYTES = 32768

MEMI, KXI, QI, KI, VI, VXI, WOI = 0, 8192, 16384, 18432, 20480, 24576, 32768
OI = VI
RED = QI
MEGA_LDS = WOI + 131072

def stamp(a, idx, wave=0):
    if not STAMP: return
    l = a.newlabel("st")
    a(f"""
    s_cmp_lg_u32 s20, {wave}
    s_cbranch_scc1 {l}
    s_memtime s[50:51]
    s_lshl_b32 s52, s2, 12
    s_lshl_b32 s53, s30, 6
    s_add_u32 s52, s52, s53
    s_add_u32 s52, s52, {hex(DBGW + idx*4)}
    s_waitcnt lgkmcnt(0)
    s_mov_b64 s[54:55], exec
    s_mov_b64 exec, 1
    v_mov_b32 v0, s50
    v_mov_b32 v2, s52
    buffer_store_dword v0, v2, s[8:11], 0 offen
    s_mov_b64 exec, s[54:55]
    v_and_b32 v2, 15, v1
    """)
    a.label(l)

def chk(a, regs, tmp):
    a(f"v_max_u32 v{tmp}, v{regs[0]}, v{regs[1]}")
    for i in range(2, len(regs), 2):
        a(f"v_max3_u32 v{tmp}, v{tmp}, v{regs[i]}, v{regs[i+1]}")
    a(f"v_cmp_ne_u32 vcc, -1, v{tmp}")
    a("s_cmp_eq_u64 vcc, exec")

def wait_flag(a, saddr, vt):
    lp = a.newlabel("wf"); ld = a.newlabel("wfd")
    a(f"v_mov_b32 v{vt}, s{saddr}")
    a("s_mov_b32 s37, 0")
    a.label(lp)
    a(f"buffer_load_dword v{vt+1}, v{vt}, s[8:11], 0 offen sc1")
    a("s_waitcnt vmcnt(0)")
    a(f"v_readfirstlane_b32 s38, v{vt+1}")
    a("s_add_u32 s37, s37, 1")
    a("s_cmp_lg_u32 s38, 0")
    a(f"s_cbranch_scc1 {ld}")
    a("s_sleep 2")
    a(f"s_cmp_lt_u32 s37, {POLL_CAP*8}")
    a(f"s_cbranch_scc1 {lp}")
    a.label(ld)

def rec_loop(a, fast, lend):
    S1 = "" if fast else " sc1"
    def prefetch():
        a(f"s_lshl_b32 s21, s20, 11\ns_add_u32 s21, s21, {KXI}\ns_mov_b32 m0, s21\ns_nop 0")
        a("buffer_load_dwordx4 v15, s[8:11], s34 offen sc1 lds")
        a("s_add_u32 s21, s21, 1024\ns_mov_b32 m0, s21\nv_add_u32 v0, 64, v15")
        a("buffer_load_dwordx4 v0, s[8:11], s34 offen sc1 lds")
        a(f"s_lshl_b32 s21, s20, 10\ns_add_u32 s21, s21, {VXI}\ns_mov_b32 m0, s21\ns_nop 0")
        a("buffer_load_dwordx4 v16, s[8:11], s35 offen sc1 lds")
        a("s_add_u32 s21, s21, 4096\ns_mov_b32 m0, s21\nv_add_u32 v0, 0x40000, v16")
        a("buffer_load_dwordx4 v0, s[8:11], s35 offen sc1 lds")
    def wait_kv(seg_sreg_expr):
        pass
    lx = a.newlabel("ip")
    a("s_cmp_ge_u32 s20, 4")
    a(f"s_cbranch_scc1 {lx}")
    a(f"s_lshl_b32 s21, s2, 2\ns_add_u32 s21, s21, {hex(FKV)}")
    wait_flag(a, 21, 20)
    prefetch()
    a.label(lx)
    lstep = a.newlabel("step")
    a.label(lstep)
    stamp(a, 0, 4)
    lg = a.newlabel("g1"); lb1 = a.newlabel("b1")
    a("s_cmp_ge_u32 s20, 4")
    a(f"s_cbranch_scc1 {lg}")
    a(f"s_branch {lb1}")
    a.label(lg)
    lp = a.newlabel("p2"); ld0 = a.newlabel("p2a"); ld1 = a.newlabel("p2b"); lj = a.newlabel("p2j")
    def ld2(b):
        a(f"buffer_load_dwordx4 v[{20+b*8}:{23+b*8}], v8, s[8:11], s31 offen sc1")
        a(f"buffer_load_dwordx4 v[{24+b*8}:{27+b*8}], v8, s[8:11], s31 offen offset:1024 sc1")
    a("s_mov_b32 s36, 0")
    ld2(0)
    a.label(lp)
    ld2(1)
    a("s_waitcnt vmcnt(2)")
    chk(a, list(range(20, 28)), 36)
    a(f"s_cbranch_scc1 {ld0}")
    ld2(0)
    a("s_waitcnt vmcnt(2)")
    chk(a, list(range(28, 36)), 36)
    a(f"s_cbranch_scc1 {ld1}")
    a(f"s_add_u32 s36, s36, 1\ns_cmp_lt_u32 s36, {POLL_CAP}\ns_cbranch_scc1 {lp}\ns_branch {ld0}")
    a.label(ld1)
    a("ds_write_b128 v9, v[28:31]")
    a("ds_write_b128 v9, v[32:35] offset:1024")
    a(f"s_branch {lj}")
    a.label(ld0)
    a("ds_write_b128 v9, v[20:23]")
    a("ds_write_b128 v9, v[24:27] offset:1024")
    a.label(lj)
    a("s_waitcnt vmcnt(0)")
    a.label(lb1)
    stamp(a, 1, 4)
    a("s_waitcnt lgkmcnt(0)")
    a("s_barrier")
    stamp(a, 2, 4)
    lw2 = a.newlabel("wm2")
    a("s_cmp_lt_u32 s20, 4")
    a(f"s_cbranch_scc1 {lw2}")
    if os.environ.get("NOWARM"):
        a(f"s_branch {lw2}")
    a("v_lshlrev_b32 v0, 4, v1")
    a("v_sub_u32 v0, v11, v0")
    a("v_lshl_add_u32 v0, v1, 6, v0")
    a("buffer_load_dword v62, v0, s[8:11], s32 offen sc1")
    a("s_add_u32 s21, s31, 8192")
    a("v_lshlrev_b32 v0, 4, v1")
    a("v_sub_u32 v0, v8, v0")
    a("v_lshl_add_u32 v0, v1, 5, v0")
    a("buffer_load_dword v63, v0, s[8:11], s21 offen sc1")
    a.label(lw2)
    def memloop(body, accz):
        for i in accz:
            a(f"v_mov_b32 v{i}, 0")
        a("ds_read_b128 v[20:23], v4")
        a("ds_read_b128 v[24:27], v4 offset:512")
        a("ds_read_b128 v[28:31], v4 offset:1024")
        for kk in range(16):
            cur = 20 + (kk & 3) * 4
            nxt = 20 + ((kk + 3) & 3) * 4
            if kk < 13:
                a(f"ds_read_b128 v[{nxt}:{nxt+3}], v4 offset:{(kk+3)*512}")
                a("s_waitcnt lgkmcnt(3)")
            else:
                a(f"s_waitcnt lgkmcnt({15-kk})")
            body(kk, cur)
    def qk_body(kk, cur):
        a(f"v_mfma_f32_16x16x32_bf16 v[36:39], v[{64+kk*4}:{67+kk*4}], v[{cur}:{cur+3}], v[36:39]")
        a(f"v_mfma_f32_16x16x32_bf16 v[40:43], v[{128+kk*4}:{131+kk*4}], v[{cur}:{cur+3}], v[40:43]")
    memloop(qk_body, range(36, 44))
    a("s_nop 7\ns_nop 1")
    a("""
    v_cvt_pk_bf16_f32 v20, v36, v37
    v_cvt_pk_bf16_f32 v21, v38, v39
    v_cvt_pk_bf16_f32 v22, v40, v41
    v_cvt_pk_bf16_f32 v23, v42, v43
    """)
    a(f"ds_write_b64 v6, v[20:21] offset:{QI}")
    a(f"ds_write_b64 v6, v[22:23] offset:{KI}")
    a("buffer_store_dwordx2 v[22:23], v13, s[8:11], s33 offen sc1")
    def v_body(kk, cur):
        a(f"v_mfma_f32_16x16x32_bf16 v[44:47], v[{cur}:{cur+3}], v[{192+kk*4}:{195+kk*4}], v[44:47]")
    def v_finish(publish):
        a("s_nop 7\ns_nop 1")
        a("v_cvt_pk_bf16_f32 v18, v44, v45")
        a("v_cvt_pk_bf16_f32 v19, v46, v47")
        if publish:
            a("s_lshl_b32 s21, s20, 9")
            a("v_lshl_add_u32 v0, v1, 3, s21")
            a(f"ds_write_b64 v0, v[18:19] offset:{VI}")
        a("buffer_store_dwordx2 v[18:19], v14, s[8:11], s33 offen sc1")
    stamp(a, 3, 4)
    llast = a.newlabel("last")
    a("s_cmp_eq_u32 s30, 63")
    a(f"s_cbranch_scc1 {llast}")
    lnw2 = a.newlabel("nw2")
    a("s_cmp_ge_u32 s20, 4")
    a(f"s_cbranch_scc1 {lnw2}")
    a("s_waitcnt vmcnt(1)")
    a.label(lnw2)
    a("s_waitcnt lgkmcnt(0)")
    a("s_barrier")
    stamp(a, 4, 4)
    lnf = a.newlabel("nf")
    a("s_cmp_lg_u32 s20, 5")
    a(f"s_cbranch_scc1 {lnf}")
    a("s_cmp_eq_u32 s30, 0")
    a(f"s_cbranch_scc1 {lnf}")
    a(f"s_lshl_b32 s21, s30, 7\ns_lshl_b32 s22, s2, 2\ns_add_u32 s21, s21, s22\ns_add_u32 s21, s21, {hex(FR - 128)}")
    a("v_mov_b32 v36, s21\nv_mov_b32 v37, 1")
    a("s_mov_b64 s[54:55], exec\ns_mov_b64 exec, 1")
    a("buffer_store_dword v37, v36, s[8:11], 0 offen sc1")
    a("s_mov_b64 exec, s[54:55]")
    a.label(lnf)
    lsk3 = a.newlabel("sk3"); lp3 = a.newlabel("p3")
    a("s_cmp_lt_u32 s20, 4")
    a(f"s_cbranch_scc1 {lp3}")
    memloop(v_body, range(44, 48))
    v_finish(True)
    a("s_waitcnt lgkmcnt(0)")
    a("s_barrier")
    a(f"s_branch {lsk3}")
    a.label(lp3)
    for kk in range(4):
        a(f"ds_read_b128 v[{20+kk*4}:{23+kk*4}], v5 offset:{QI + kk*512}")
    a(f"v_lshlrev_b32 v0, 4, v1")
    seq = [(0, kk) for kk in range(4)] + [(1, kk) for kk in range(4)] + [(2, kk) for kk in range(4)]
    SA = 36
    def rd(i):
        t, kk = seq[i]
        r = 48 + (i & 3) * 4
        if t == 0:
            a(f"ds_read_b128 v[{r}:{r+3}], v5 offset:{KI + kk*512}")
        else:
            a(f"ds_read_b128 v[{r}:{r+3}], v0 offset:{KXI + ((t-1)*4+kk)*1024}")
    for i in range(3):
        rd(i)
    for i in range(12):
        a(f"v_mov_b32 v{SA+i}, 0")
    for i in range(12):
        t, kk = seq[i]
        r = 48 + (i & 3) * 4
        if i < 9:
            rd(i + 3)
            a("s_waitcnt lgkmcnt(3)")
        else:
            a(f"s_waitcnt lgkmcnt({11-i})")
        a(f"v_mfma_f32_16x16x32_bf16 v[{SA+t*4}:{SA+3+t*4}], v[{r}:{r+3}], v[{20+kk*4}:{23+kk*4}], v[{SA+t*4}:{SA+3+t*4}]")
    for i in range(4):
        a(f"ds_read_b128 v[{48+i*4}:{51+i*4}], v4 offset:{i*512}")
    for i in range(4):
        a(f"v_mov_b32 v{24+i}, 0")
    a("s_nop 4")
    sm = Asm()
    S = list(range(SA, SA + 12))
    round_scale(sm, S, 20)
    sm("v_mov_b32 v20, 0xff800000")
    for r in range(SA, SA + 4):
        sm(f"v_cndmask_b32 v{r}, v20, v{r}, s[40:41]")
    softmax_regs(sm, S, 21, 22, 23)
    lines = sm.lines
    step = max(1, len(lines) // 17)
    kk = 0
    for idx, ln in enumerate(lines):
        a.lines.append(ln)
        if kk < 16 and idx % step == step - 1:
            cur = 48 + (kk & 3) * 4
            a(f"s_waitcnt lgkmcnt({min(3, 15-kk)})")
            a(f"v_mfma_f32_16x16x32_bf16 v[24:27], v[{cur}:{cur+3}], v[{192+kk*4}:{195+kk*4}], v[24:27]")
            if kk + 4 < 16:
                a(f"ds_read_b128 v[{cur}:{cur+3}], v4 offset:{(kk+4)*512}")
            kk += 1
    assert kk == 16
    for i in range(6):
        a(f"v_cvt_pk_bf16_f32 v{28+i}, v{SA+2*i}, v{SA+1+2*i}")
    a("s_nop 3")
    a("v_cvt_pk_bf16_f32 v18, v24, v25")
    a("v_cvt_pk_bf16_f32 v19, v26, v27")
    a("buffer_store_dwordx2 v[18:19], v14, s[8:11], s33 offen sc1")
    a("s_barrier")
    a("s_lshl_b32 s21, s20, 9")
    a("v_lshl_add_u32 v0, v1, 3, s21")
    a(f"ds_read_b64 v[48:49], v0 offset:{VI + 2048}")
    a("s_lshl_b32 s21, s20, 10")
    a("v_lshlrev_b32 v0, 6, v2")
    a("v_lshl_add_u32 v0, v3, 3, v0")
    a("v_add_u32 v0, s21, v0")
    a(f"ds_read_b64 v[60:61], v0 offset:{VXI}")
    a(f"ds_read_b64 v[62:63], v0 offset:{VXI+32}")
    a(f"ds_read_b64 v[52:53], v0 offset:{VXI+4096}")
    a(f"ds_read_b64 v[54:55], v0 offset:{VXI+4096+32}")
    for i in range(8):
        a(f"v_mov_b32 v{36+i}, 0")
    a("s_waitcnt lgkmcnt(0)")
    a("v_mfma_f32_16x16x16_bf16 v[36:39], v[18:19], v[28:29], v[36:39]")
    a("v_mfma_f32_16x16x16_bf16 v[40:43], v[48:49], v[28:29], v[40:43]")
    a("s_nop 7")
    a("v_mfma_f32_16x16x32_bf16 v[36:39], v[60:63], v[30:33], v[36:39]")
    a("v_mfma_f32_16x16x32_bf16 v[40:43], v[52:55], v[30:33], v[40:43]")
    a("s_nop 7\ns_nop 1")
    a("v_cvt_pk_bf16_f32 v20, v36, v37")
    a("v_cvt_pk_bf16_f32 v21, v38, v39")
    a("v_cvt_pk_bf16_f32 v22, v40, v41")
    a("v_cvt_pk_bf16_f32 v23, v42, v43")
    a(f"ds_write_b64 v6, v[20:21] offset:{OI}")
    a(f"ds_write_b64 v6, v[22:23] offset:{OI + 1024}")
    a("s_waitcnt lgkmcnt(0)")
    a.label(lsk3)
    stamp(a, 5, 4)
    items = [(j, kk) for j in range(4) for kk in range(4)]
    RD = 5
    def rdw(i):
        j, kk = items[i]
        r = 36 + (i % RD) * 4
        a(f"ds_read_b128 v[{r}:{r+3}], v7 offset:{j*4096 + kk*1024}")
    for i in range(RD - 1):
        rdw(i)
    a("s_waitcnt vmcnt(2)")
    a("s_barrier")
    stamp(a, 6, 4)
    for kk in range(4):
        a(f"ds_read_b128 v[{20+kk*4}:{23+kk*4}], v5 offset:{OI + kk*512}")
    a("v_mov_b32 v0, v10")
    for i in range(16):
        j, kk = items[i]
        r = 36 + (i % RD) * 4
        acc = 56 if (j & 1) == 0 else 60
        if kk == 0:
            for t in range(4):
                a(f"v_mov_b32 v{acc+t}, 0")
        if i + RD - 1 < 16:
            rdw(i + RD - 1)
            a("s_waitcnt lgkmcnt(0)" if i == 0 else f"s_waitcnt lgkmcnt({RD-1})")
        else:
            a(f"s_waitcnt lgkmcnt({15-i})")
        a(f"v_mfma_f32_16x16x32_bf16 v[{acc}:{acc+3}], v[{r}:{r+3}], v[{20+kk*4}:{23+kk*4}], v[{acc}:{acc+3}]")
        if kk == 3:
            a("s_nop 7\ns_nop 1")
            for t in range(4):
                a(f"v_min_u32 v{acc+t}, -2, v{acc+t}")
            a(f"buffer_store_dwordx4 v[{acc}:{acc+3}], v0, s[8:11], s32 offen{S1}")
            a("v_add_u32 v0, 0x4000, v0")
    stamp(a, 7, 4)
    lg5 = a.newlabel("g5"); lb4 = a.newlabel("b4")
    a("s_cmp_ge_u32 s20, 4")
    a(f"s_cbranch_scc1 {lg5}")
    a("s_add_u32 s34, s34, 0x80000")
    a("s_add_u32 s35, s35, 64")
    a("s_add_u32 s21, s30, 1\ns_and_b32 s22, s21, 3\ns_cmp_lg_u32 s22, 0")
    lnk = a.newlabel("nk")
    a(f"s_cbranch_scc1 {lnk}")
    a(f"s_lshl_b32 s21, s21, 5\ns_lshl_b32 s22, s2, 2\ns_add_u32 s21, s21, s22\ns_add_u32 s21, s21, {hex(FKV)}")
    wait_flag(a, 21, 36)
    a.label(lnk)
    prefetch()
    a(f"s_branch {lb4}")
    a.label(lg5)
    lp = a.newlabel("p1"); ld0 = a.newlabel("p1a"); ld1 = a.newlabel("p1b"); lj = a.newlabel("p1j")
    def ld(b):
        for i in range(4):
            a(f"buffer_load_dwordx4 v[{20+b*16+i*4}:{23+b*16+i*4}], v11, s[8:11], s32 offen offset:{i*1024} sc1")
    a("s_mov_b32 s36, 0")
    ld(0)
    a.label(lp)
    ld(1)
    a("s_waitcnt vmcnt(4)")
    chk(a, list(range(20, 36)), 52)
    a(f"s_cbranch_scc1 {ld0}")
    ld(0)
    a("s_waitcnt vmcnt(4)")
    chk(a, list(range(36, 52)), 52)
    a(f"s_cbranch_scc1 {ld1}")
    a(f"s_add_u32 s36, s36, 1\ns_cmp_lt_u32 s36, {POLL_CAP}\ns_cbranch_scc1 {lp}\ns_branch {ld0}")
    for (lab, b) in ((ld1, 36), (ld0, 20)):
        a.label(lab)
        for i in range(4):
            a(f"v_add_f32 v{52+i}, v{b+i}, v{b+4+i}")
            a(f"v_add_f32 v{56+i}, v{b+8+i}, v{b+12+i}")
        for i in range(4):
            a(f"v_add_f32 v{52+i}, v{52+i}, v{56+i}")
        if lab == ld1:
            a(f"s_branch {lj}")
    a.label(lj)
    stamp(a, 8, 4)
    for i in range(4):
        a(f"v_mov_b32 v{56+i}, v{52+i}")
    a("s_nop 1")
    for i in range(4):
        a(f"v_permlane32_swap_b32 v{52+i}, v{56+i}")
    a("s_nop 1")
    for i in range(4):
        a(f"v_add_f32 v{52+i}, v{52+i}, v{56+i}")
    a("ds_write_b128 v12, v[52:55]")
    a("s_waitcnt lgkmcnt(0)")
    a.label(lb4)
    a("s_barrier")
    stamp(a, 9, 4)
    lnw = a.newlabel("nw")
    a("s_cmp_lg_u32 s20, 4")
    a(f"s_cbranch_scc1 {lnw}")
    a("v_lshlrev_b32 v0, 4, v1")
    for i in range(2):
        a(f"ds_read_b128 v[{52+i*4}:{55+i*4}], v0 offset:{RED + i*1024}")
    a("s_waitcnt lgkmcnt(0)")
    for i in range(4):
        a(f"v_add_f32 v{52+i}, v{52+i}, v{56+i}")
    for i in range(4):
        a(f"v_mov_b32 v{56+i}, v{52+i}")
    a("s_nop 1")
    for i in range(4):
        a(f"v_permlane32_swap_b32 v{52+i}, v{56+i}")
    a("s_nop 1")
    for i in range(4):
        a(f"v_add_f32 v{52+i}, v{52+i}, v{56+i}")
    a("v_cvt_pk_bf16_f32 v56, v52, v53")
    a("v_cvt_pk_bf16_f32 v57, v54, v55")
    a("v_min_u32 v56, -2, v56")
    a("v_min_u32 v57, -2, v57")
    a(f"buffer_store_dwordx2 v[56:57], v17, s[8:11], s31 offen{S1}")
    stamp(a, 10, 4)
    a.label(lnw)
    a(f"""
    s_add_u32 s30, s30, 1
    s_add_u32 s31, s31, 8192
    s_add_u32 s32, s32, 0x80000
    s_add_u32 s33, s33, 0x10000
    s_branch {lstep}
    """)
    a.label(llast)
    memloop(v_body, range(44, 48))
    v_finish(False)
    a("s_waitcnt vmcnt(0)")
    a("s_barrier")
    a("s_cmp_lg_u32 s20, 5")
    a(f"s_cbranch_scc1 {lend}")
    a(f"s_lshl_b32 s22, s2, 2\ns_add_u32 s21, s22, {hex(FR + 63*128)}")
    a("v_mov_b32 v36, s21\nv_mov_b32 v37, 1")
    a("s_mov_b64 exec, 1")
    a("buffer_store_dword v37, v36, s[8:11], 0 offen sc1")
    a("v_subrev_u32 v36, 128, v36")
    a("buffer_store_dword v37, v36, s[8:11], 0 offen sc1")
    a(f"s_branch {lend}")

def gen_rec_role(a, lend):
    a("""
    v_and_b32 v2, 15, v1          ; m
    v_lshrrev_b32 v3, 4, v1       ; g
    v_and_b32 v18, 7, v1          ; m&7
    """)
    a(f"""
    s_getreg_b32 s21, hwreg(HW_REG_XCC_ID)
    s_add_u32 s21, s21, 1
    s_lshl_b32 s22, s2, 2
    s_add_u32 s22, s22, {hex(XT)}
    v_mov_b32 v20, s22
    v_mov_b32 v21, s21
    s_mov_b64 exec, 1
    buffer_store_dword v21, v20, s[8:11], 0 offen sc1
    s_mov_b64 exec, -1
    """)
    a("s_lshl_b32 s21, s2, 3\ns_add_u32 s21, s21, s20\ns_lshl_b32 s21, s21, 14")
    a("v_lshl_add_u32 v19, v1, 4, s21")
    for j in range(3):
        a(f"v_add_u32 v20, {hex(WQKV + j*4*MB)}, v19")
        for kk in range(16):
            if kk % 4 == 0 and kk:
                a("v_add_u32 v20, 0x1000, v20")
            r = 64 + j*64 + kk*4
            a(f"buffer_load_dwordx4 v[{r}:{r+3}], v20, s[8:11], 0 offen offset:{(kk%4)*1024}")
    a("s_lshl_b32 s21, s20, 19")
    a("s_lshl_b32 s22, s2, 12")
    a("s_add_u32 s21, s21, s22")
    a(f"s_add_u32 s21, s21, {hex(WO)}")
    a("v_lshl_add_u32 v20, v1, 4, s21")
    a("s_lshl_b32 s22, s20, 14")
    a(f"s_add_u32 s22, s22, {WOI}")
    a("v_lshl_add_u32 v21, v1, 4, s22")
    for j in range(4):
        for kk in range(4):
            a(f"buffer_load_dwordx4 v[{24+kk*4}:{27+kk*4}], v20, s[8:11], 0 offen offset:{kk*1024}")
        a("s_waitcnt vmcnt(0)")
        for kk in range(4):
            a(f"ds_write_b128 v21, v[{24+kk*4}:{27+kk*4}] offset:{j*4096 + kk*1024}")
        if j < 3:
            a(f"v_add_u32 v20, {hex(128*1024)}, v20")
        a("s_waitcnt lgkmcnt(0)")
    a(f"""
    v_lshlrev_b32 v5, 3, v3
    v_add_lshl_u32 v5, v5, v18, 4        ; (g*8+(m&7))*16
    v_add_u32 v4, {MEMI}, v5
    s_and_b32 s21, s20, 1
    s_lshl_b32 s21, s21, 1
    v_lshrrev_b32 v6, 1, v3
    v_add_u32 v6, s21, v6
    v_lshlrev_b32 v6, 7, v6
    v_lshl_add_u32 v6, v18, 4, v6
    v_and_b32 v19, 1, v3
    v_lshl_add_u32 v6, v19, 3, v6
    s_lshr_b32 s21, s20, 1
    s_lshl_b32 s21, s21, 9
    v_add_u32 v6, s21, v6
    s_lshl_b32 s21, s20, 14
    s_add_u32 s21, s21, {WOI}
    v_lshl_add_u32 v7, v1, 4, s21
    s_and_b32 s23, s20, 3
    s_lshl_b32 s21, s23, 11
    v_lshl_add_u32 v9, v1, 4, s21
    v_add_u32 v8, {hex(M2)}, v9
    v_add_u32 v9, {MEMI}, v9
    s_lshl_b32 s21, s20, 16               ; (4w)*16384
    s_lshl_b32 s22, s2, 9
    s_add_u32 s21, s21, s22
    s_add_u32 s21, s21, {hex(H1)}
    v_add_u32 v10, s21, v5
    s_lshl_b32 s21, s2, 14
    s_lshl_b32 s22, s23, 12
    s_add_u32 s21, s21, s22
    s_add_u32 s21, s21, {hex(H1)}
    v_lshl_add_u32 v11, v1, 4, s21
    v_and_b32 v19, 31, v1
    s_lshl_b32 s21, s23, 9
    s_add_u32 s21, s21, {RED}
    v_lshl_add_u32 v12, v19, 4, s21
    s_lshl_b32 s21, s2, 8
    s_lshl_b32 s22, s20, 5
    s_add_u32 s21, s21, s22               ; (h*128+16w)*2
    v_lshlrev_b32 v13, 13, v18
    v_lshl_add_u32 v13, v3, 3, v13
    v_add_u32 v13, s21, v13
    v_add_u32 v13, {hex(KM)}, v13
    s_lshl_b32 s22, s21, 3                ; (h*128+16w)*16
    v_lshl_add_u32 v14, v2, 4, s22
    v_and_b32 v19, 1, v3
    v_lshl_add_u32 v14, v19, 3, v14
    v_add_u32 v14, {hex(VMT)}, v14
    s_lshr_b32 s21, s20, 1
    s_lshl_b32 s21, s21, 4
    v_add_u32 v15, s21, v2
    v_lshlrev_b32 v15, 14, v15
    s_lshl_b32 s21, s2, 8
    s_and_b32 s22, s20, 1
    s_lshl_b32 s22, s22, 7
    s_add_u32 s21, s21, s22
    s_add_u32 s21, s21, {hex(QK + 8192)}
    v_lshl_add_u32 v15, v3, 4, v15
    v_add_u32 v15, s21, v15
    s_lshl_b32 s21, s2, 7
    s_lshl_b32 s22, s20, 4
    s_add_u32 s21, s21, s22
    v_lshrrev_b32 v16, 2, v1
    v_add_u32 v16, s21, v16
    v_lshlrev_b32 v16, 12, v16
    v_and_b32 v19, 3, v1
    v_lshl_add_u32 v16, v19, 4, v16
    v_add_u32 v16, {hex(VT)}, v16
    v_lshrrev_b32 v19, 4, v1
    v_and_b32 v19, 1, v19
    v_lshl_add_u32 v17, v19, 3, v18
    v_lshlrev_b32 v17, 4, v17
    v_lshrrev_b32 v19, 3, v1
    v_and_b32 v19, 1, v19
    v_lshl_add_u32 v17, v19, 3, v17
    s_lshl_b32 s21, s2, 8
    s_add_u32 s21, s21, {hex(M2 + 8192)}
    v_add_u32 v17, s21, v17
    v_cmp_gt_u32 s[40:41], 2, v3
    s_mov_b32 s30, 0
    s_mov_b32 s31, 0
    s_mov_b32 s32, 0
    s_mov_b32 s33, 0
    s_mov_b32 s34, 0
    s_mov_b32 s35, 0
    """)
    lp = a.newlabel("xc")
    a(f"""
    v_and_b32 v20, 31, v1
    v_lshlrev_b32 v20, 2, v20
    v_add_u32 v20, {hex(XT)}, v20
    s_mov_b32 s36, 0
    """)
    a.label(lp)
    a(f"""
    buffer_load_dword v21, v20, s[8:11], 0 offen sc1
    s_add_u32 s36, s36, 1
    s_waitcnt vmcnt(0)
    v_cmp_eq_u32 vcc, 0, v21
    s_cmp_lt_u32 s36, {POLL_CAP}
    s_cselect_b64 s[44:45], vcc, 0
    s_cmp_lg_u64 s[44:45], 0
    s_cbranch_scc1 {lp}
    v_readfirstlane_b32 s21, v21
    s_nop 3
    v_cmp_ne_u32 vcc, s21, v21
    s_cmp_lg_u64 vcc, 0
    """)
    lslow = a.newlabel("slow")
    if os.environ.get("FORCESLOW"):
        a(f"s_branch {lslow}")
    a(f"s_cbranch_scc1 {lslow}")
    rec_loop(a, True, lend)
    a.label(lslow)
    rec_loop(a, False, lend)

def worker_gemm(a, s_nt0, s_m0, flag_s):
    a("s_barrier")
    a(f"""
    s_lshl_b32 s21, s20, 4
    s_add_u32 s22, s21, s{s_m0}
    s_lshl_b32 s22, s22, 10
    s_add_u32 s22, s22, {hex(XN)}
    v_lshl_add_u32 v4, v1, 4, s22
    s_mul_i32 s21, s21, 1040
    v_lshl_add_u32 v5, v1, 4, s21
    """)
    for half in range(2):
        for i in range(8):
            r = 16 + i*4
            if (half*8+i) % 4 == 0 and (half*8+i):
                a("v_add_u32 v4, 0x1000, v4")
            a(f"buffer_load_dwordx4 v[{r}:{r+3}], v4, s[8:11], 0 offen offset:{((half*8+i)%4)*1024}")
        for i in range(8):
            r = 16 + i*4
            a(f"s_waitcnt vmcnt({7-i})")
            a(f"ds_write_b128 v5, v[{r}:{r+3}] offset:{(half*8+i)*1040}")
    a("s_waitcnt lgkmcnt(0)")
    a("s_barrier")
    a(f"""
    s_lshl_b32 s25, s24, 1
    s_add_u32 s22, s{s_nt0}, s25
    s_mov_b32 s23, 1040
    v_mul_lo_u32 v4, v2, s23
    v_lshl_add_u32 v4, v3, 4, v4
    """)
    vX = [200+i for i in range(8)]
    for mt in range(8):
        a(f"v_add_u32 v{vX[mt]}, {mt*16*1040}, v4")
    a("s_lshl_b32 s25, s22, 14")
    a(f"s_add_u32 s25, s25, {hex(WQKV)}")
    a("v_lshl_add_u32 v4, v1, 4, s25")
    for nt in range(2):
        a(f"v_add_u32 v{12+nt}, {nt*16*1024}, v4")
    a("s_mov_b32 s26, 0\ns_mov_b32 s27, 0")
    XF, WF, ACC = 16, 80, 96
    lv = a.newlabel("wv"); ldn = a.newlabel("wdn")
    a("s_cmp_ge_u32 s22, 512")
    a(f"s_cbranch_scc1 {lv}")
    gemm_loop(a, 8, 2, 16, 8, True, vX, [12,13], XF, WF, ACC, 26, 27, 28, xlds=True)
    a(f"""
    v_add_u32 v4, s{s_m0}, v2
    v_lshlrev_b32 v4, 14, v4
    s_lshl_b32 s25, s22, 5
    v_lshl_add_u32 v4, v3, 3, v4
    v_add_u32 v4, s25, v4
    v_add_u32 v4, {hex(QK)}, v4
    """)
    for mt in range(8):
        for nt in range(2):
            c = ACC + (nt * 8 + mt) * 4
            a(f"v_cvt_pk_bf16_f32 v{16+nt*2}, v{c}, v{c+1}")
            a(f"v_cvt_pk_bf16_f32 v{17+nt*2}, v{c+2}, v{c+3}")
            a(f"buffer_store_dwordx2 v[{16+nt*2}:{17+nt*2}], v4, s[8:11], 0 offen offset:{nt*32} sc1")
            a("s_nop 1")
        if mt < 7:
            a(f"v_add_u32 v4, {hex(16*16384)}, v4")
    a(f"s_branch {ldn}")
    a.label(lv)
    gemm_loop(a, 8, 2, 16, 8, False, vX, [12,13], XF, WF, ACC, 26, 27, 28, xlds=True)
    a(f"""
    s_sub_u32 s25, s22, 512
    s_lshl_b32 s25, s25, 4
    v_add_u32 v4, s25, v2
    v_lshlrev_b32 v4, 12, v4
    s_lshl_b32 s25, s{s_m0}, 1
    v_lshl_add_u32 v4, v3, 3, v4
    v_add_u32 v4, s25, v4
    v_add_u32 v4, {hex(VT)}, v4
    """)
    for nt in range(2):
        for mt in range(8):
            c = ACC + (nt * 8 + mt) * 4
            a(f"v_cvt_pk_bf16_f32 v{16+(mt&1)*2}, v{c}, v{c+1}")
            a(f"v_cvt_pk_bf16_f32 v{17+(mt&1)*2}, v{c+2}, v{c+3}")
            a(f"buffer_store_dwordx2 v[{16+(mt&1)*2}:{17+(mt&1)*2}], v4, s[8:11], 0 offen offset:{mt*32} sc1")
            a("s_nop 1")
        if nt < 1:
            a(f"v_add_u32 v4, {hex(16*4096)}, v4")
    a.label(ldn)

def worker_attn(a):
    a(f"""
    v_and_b32 v4, 7, v1
    s_lshl_b32 s24, s23, 19
    s_lshl_b32 s25, s22, 8
    s_add_u32 s24, s24, s25
    s_add_u32 s24, s24, {hex(QK)}
    v_lshlrev_b32 v5, 14, v2
    v_lshl_add_u32 v5, v3, 4, v5
    v_add_u32 v5, s24, v5
    v_add_u32 v6, {hex(16*16384)}, v5
    s_lshl_b32 s24, s23, 16
    s_add_u32 s24, s24, s25
    s_add_u32 s24, s24, {hex(KM)}
    v_lshlrev_b32 v7, 13, v4
    v_lshl_add_u32 v7, v3, 4, v7
    v_add_u32 v7, s24, v7
    """)
    for tt in range(2):
        for kk in range(4):
            r = 16 + (tt*4+kk)*4
            a(f"buffer_load_dwordx4 v[{r}:{r+3}], v{5+tt}, s[8:11], 0 offen offset:{kk*64} sc1")
    for kk in range(4):
        r = 48 + kk*4
        a(f"buffer_load_dwordx4 v[{r}:{r+3}], v7, s[8:11], 0 offen offset:{kk*64} sc1")
    a("v_add_u32 v8, 0x2000, v5\nv_add_u32 v9, 0x2000, v6")
    for t in range(1, 3):
        for kk in range(4):
            r = 48 + (t*4+kk)*4
            a(f"buffer_load_dwordx4 v[{r}:{r+3}], v{7+t}, s[8:11], 0 offen offset:{kk*64} sc1")
    ACC = 96
    for i in range(24):
        a(f"v_mov_b32 v{ACC+i}, 0")
    a("s_waitcnt vmcnt(0)")
    for t in range(3):
        for tt in range(2):
            for kk in range(4):
                c = ACC + (t*2+tt)*4
                a(f"v_mfma_f32_16x16x32_bf16 v[{c}:{c+3}], v[{48+(t*4+kk)*4}:{51+(t*4+kk)*4}], v[{16+(tt*4+kk)*4}:{19+(tt*4+kk)*4}], v[{c}:{c+3}]")
    a("s_nop 7\ns_nop 1")
    a(f"""
    s_lshl_b32 s24, s23, 16
    s_lshl_b32 s25, s22, 11
    s_add_u32 s24, s24, s25
    s_add_u32 s24, s24, {hex(VMT)}
    v_and_b32 v10, 1, v3
    v_lshlrev_b32 v10, 3, v10
    v_lshl_add_u32 v10, v2, 4, v10
    v_add_u32 v10, s24, v10
    s_lshl_b32 s24, s22, 19
    s_lshl_b32 s25, s23, 6
    s_add_u32 s24, s24, s25
    s_add_u32 s24, s24, {hex(VT)}
    v_lshlrev_b32 v11, 12, v2
    v_lshl_add_u32 v11, v3, 3, v11
    v_add_u32 v11, s24, v11
    """)
    for et in range(8):
        r = 16 + et*6
        a(f"buffer_load_dwordx2 v[{r}:{r+1}], v10, s[8:11], 0 offen offset:{et*256} sc1")
        a(f"buffer_load_dwordx2 v[{r+2}:{r+3}], v11, s[8:11], 0 offen sc1")
        a(f"buffer_load_dwordx2 v[{r+4}:{r+5}], v11, s[8:11], 0 offen offset:32 sc1")
        if et < 7:
            a("v_add_u32 v11, 0x10000, v11")
    a("v_lshlrev_b32 v12, 2, v3")
    a("v_sub_u32 v12, v2, v12")
    a("v_cmp_gt_u32 s[40:41], 2, v3")
    a("v_mov_b32 v13, 0xff800000")
    P = 64
    for tt in range(2):
        S = [ACC + (t*2+tt)*4 + r for t in range(3) for r in range(4)]
        round_scale(a, S, 14)
        for r in range(4):
            a(f"v_cndmask_b32 v{S[r]}, v13, v{S[r]}, s[40:41]")
        for t in range(1, 3):
            for r in range(4):
                cst = (t-1)*16 + r - tt*16
                a(f"v_cmp_le_i32 vcc, {cst}, v12")
                a("s_nop 1")
                a(f"v_cndmask_b32 v{S[t*4+r]}, v13, v{S[t*4+r]}, vcc")
        softmax_regs(a, S, 14, 15, 90)
        for i in range(6):
            a(f"v_cvt_pk_bf16_f32 v{P+tt*6+i}, v{S[2*i]}, v{S[2*i+1]}")
    a(f"""
    s_lshl_b32 s24, s23, 18
    s_lshl_b32 s25, s22, 8
    s_add_u32 s24, s24, s25
    s_add_u32 s24, s24, {hex(OB)}
    v_lshlrev_b32 v12, 13, v2
    v_lshl_add_u32 v12, v3, 3, v12
    v_add_u32 v12, s24, v12
    v_add_u32 v13, {hex(16*8192)}, v12
    s_waitcnt vmcnt(0)
    """)
    OA = 80
    for et in range(8):
        r = 16 + et*6
        for tt in range(2):
            c = OA + tt*4
            for i in range(4):
                a(f"v_mov_b32 v{c+i}, 0")
            a("s_nop 1")
            a(f"v_mfma_f32_16x16x16_bf16 v[{c}:{c+3}], v[{r}:{r+1}], v[{P+tt*6}:{P+tt*6+1}], v[{c}:{c+3}]")
            a("s_nop 7")
            a(f"v_mfma_f32_16x16x32_bf16 v[{c}:{c+3}], v[{r+2}:{r+5}], v[{P+tt*6+2}:{P+tt*6+5}], v[{c}:{c+3}]")
        a("s_nop 7\ns_nop 1")
        for tt in range(2):
            c = OA + tt*4
            a(f"v_cvt_pk_bf16_f32 v{88+tt*2}, v{c}, v{c+1}")
            a(f"v_cvt_pk_bf16_f32 v{89+tt*2}, v{c+2}, v{c+3}")
            a(f"buffer_store_dwordx2 v[{88+tt*2}:{89+tt*2}], v{12+tt}, s[8:11], 0 offen offset:{et*32} sc1")
        a("s_nop 1")

NW = 224
def gen_worker_role(a, lend):
    a("""
    v_and_b32 v2, 15, v1
    v_lshrrev_b32 v3, 4, v1
    s_and_b32 s24, s20, 3
    s_lshr_b32 s42, s20, 2         ; half
    s_mov_b32 s43, s29
    """)
    lt = a.newlabel("gt"); lq = a.newlabel("gq"); lgo = a.newlabel("ggo"); ldone = a.newlabel("gdone")
    a.label(lt)
    a("s_cmp_ge_u32 s43, 768")
    a(f"s_cbranch_scc1 {ldone}")
    a("s_cmp_ge_u32 s43, 512")
    a(f"s_cbranch_scc1 {lq}")
    a(f"""
    s_lshr_b32 s44, s43, 5         ; mb
    s_and_b32 s45, s43, 31         ; h
    s_lshl_b32 s46, s45, 3         ; h*8 tiles
    s_lshl_b32 s47, s42, 8         ; half*256 : k -> 256.., v -> 512..
    s_add_u32 s46, s46, s47
    s_add_u32 s46, s46, 256        ; nt0
    s_lshl_b32 s47, s44, 7         ; m0
    s_lshl_b32 s48, s43, 2
    s_add_u32 s48, s48, {hex(FKV)}
    s_branch {lgo}
    """)
    a.label(lq)
    a(f"""
    s_sub_u32 s45, s43, 512
    s_lshr_b32 s44, s45, 4         ; mb
    s_and_b32 s45, s45, 15
    s_lshl_b32 s45, s45, 1
    s_add_u32 s45, s45, s42        ; h
    s_lshl_b32 s46, s45, 3         ; nt0
    s_lshl_b32 s47, s44, 7
    s_lshl_b32 s48, s44, 5
    s_add_u32 s48, s48, s45
    s_lshl_b32 s48, s48, 2
    s_add_u32 s48, s48, {hex(FQ)}
    """)
    a.label(lgo)
    worker_gemm(a, 46, 47, 48)
    a("s_waitcnt vmcnt(0)")
    a("s_barrier")
    lnf = a.newlabel("gnf")
    a("s_cmp_lg_u32 s24, 0")
    a(f"s_cbranch_scc1 {lnf}")
    a("s_cmp_ge_u32 s43, 512")
    lyes = a.newlabel("gy")
    a(f"s_cbranch_scc1 {lyes}")
    a("s_cmp_lg_u32 s42, 0")
    a(f"s_cbranch_scc1 {lnf}")
    a.label(lyes)
    a("v_mov_b32 v4, s48\nv_mov_b32 v5, 1")
    a("s_mov_b64 exec, 1")
    a("buffer_store_dword v5, v4, s[8:11], 0 offen sc1")
    a("s_mov_b64 exec, -1")
    a.label(lnf)
    a(f"s_add_u32 s43, s43, {NW}")
    a(f"s_branch {lt}")
    a.label(ldone)
    a("s_mov_b32 s43, s29")
    la = a.newlabel("pt"); lA = a.newlabel("pA"); lW = a.newlabel("pW"); lF1 = a.newlabel("pF1"); lF2 = a.newlabel("pF2"); lnext = a.newlabel("pn")
    a.label(la)
    a("s_cmp_ge_u32 s43, 992")
    a(f"s_cbranch_scc1 {lend}")
    a(f"""
    s_mul_i32 s44, s43, 2115
    s_lshr_b32 s44, s44, 16          ; tb
    s_mul_i32 s45, s44, 31
    s_sub_u32 s45, s43, s45          ; r
    s_cmp_lt_u32 s45, 8
    s_cbranch_scc1 {lA}
    s_cmp_lt_u32 s45, 16
    s_cbranch_scc1 {lW}
    s_cmp_lt_u32 s45, 23
    s_cbranch_scc1 {lF1}
    s_branch {lF2}
    """)
    def set_flag(sreg):
        l = a.newlabel("sf")
        a("s_waitcnt vmcnt(0)")
        a("s_barrier")
        a("s_cmp_lg_u32 s20, 0")
        a(f"s_cbranch_scc1 {l}")
        a(f"v_mov_b32 v4, s{sreg}\nv_mov_b32 v5, 1")
        a("s_mov_b64 exec, 1")
        a("buffer_store_dword v5, v4, s[8:11], 0 offen sc1")
        a("s_mov_b64 exec, -1")
        a.label(l)
    a.label(lA)
    a(f"""
    s_lshl_b32 s23, s44, 1
    s_lshr_b32 s21, s45, 2
    s_add_u32 s23, s23, s21          ; s
    s_and_b32 s22, s45, 3
    s_lshl_b32 s46, s23, 2
    s_add_u32 s46, s46, s22
    s_lshl_b32 s46, s46, 2
    s_add_u32 s46, s46, {hex(FA)}
    s_lshl_b32 s22, s22, 3
    s_add_u32 s22, s22, s20          ; h
    s_lshl_b32 s21, s23, 5
    s_add_u32 s21, s21, s22
    s_lshl_b32 s21, s21, 2
    s_add_u32 s21, s21, {hex(FR)}
    """)
    wait_flag(a, 21, 16)
    a(f"""
    s_lshr_b32 s21, s23, 2
    s_lshl_b32 s21, s21, 5
    s_add_u32 s21, s21, s22
    s_lshl_b32 s21, s21, 2
    s_add_u32 s47, s21, {hex(FQ)}
    s_add_u32 s21, s21, {hex(FKV)}
    """)
    wait_flag(a, 21, 16)
    wait_flag(a, 47, 16)
    worker_attn(a)
    set_flag(46)
    a(f"s_branch {lnext}")

    def splitk_stage(A_off, lda, W_off, kk_per_wave, nwaves, w_nt_stride, w_kk_stride, is_w):
        a(f"""
        s_lshl_b32 s21, s44, 6            ; m0
        s_lshl_b32 s22, s45, 2            ; nt0
        v_add_u32 v4, s21, v2
        s_mov_b32 s23, {lda}
        v_mul_lo_u32 v4, v4, s23
        v_lshl_add_u32 v4, v3, 4, v4
        v_add_u32 v4, {hex(A_off)}, v4
        """)
        for mt in range(4):
            a(f"v_add_u32 v{8+mt}, {mt*16*lda}, v4")
        a(f"s_mul_i32 s25, s22, {w_nt_stride}")
        a(f"s_add_u32 s25, s25, {hex(W_off)}")
        a("v_lshl_add_u32 v4, v1, 4, s25")
        for nt in range(4):
            a(f"v_add_u32 v{12+nt}, {nt*w_nt_stride}, v4")
        a(f"s_mul_i32 s26, s20, {kk_per_wave*64}")
        a(f"s_mul_i32 s27, s20, {kk_per_wave*w_kk_stride}")
        XF, WF, ACC = 16, 48, 80
        lz = a.newlabel("skz"); lr = a.newlabel("skr")
        if nwaves < 8:
            a(f"s_cmp_ge_u32 s20, {nwaves}")
            a(f"s_cbranch_scc1 {lz}")
        gemm_loop(a, 4, 4, kk_per_wave, 8, True, [8,9,10,11], [12,13,14,15], XF, WF, ACC, 26, 27, 28, wstride=w_kk_stride, xsc1=True)
        if nwaves < 8:
            a(f"s_branch {lr}")
            a.label(lz)
            for i in range(64):
                a(f"v_mov_b32 v{ACC+i}, 0")
            a.label(lr)
        a("s_lshl_b32 s25, s20, 14")
        a("v_lshl_add_u32 v4, v1, 4, s25")
        for q in range(16):
            a(f"ds_write_b128 v4, v[{ACC+q*4}:{ACC+q*4+3}] offset:{q*1024}")
        a("s_waitcnt lgkmcnt(0)")
        a("s_barrier")
        a("s_lshl_b32 s25, s20, 11")
        a("v_lshl_add_u32 v4, v1, 4, s25")
        for v in range(8):
            a(f"v_add_u32 v5, {v*16384}, v4") if v >= 4 else None
            for i in range(2):
                r = 16 + (v*2+i)*4
                if v < 4:
                    a(f"ds_read_b128 v[{r}:{r+3}], v4 offset:{v*16384 + i*1024}")
                else:
                    a(f"ds_read_b128 v[{r}:{r+3}], v5 offset:{i*1024}")
        a(f"""
        s_and_b32 s25, s20, 1
        s_lshl_b32 s25, s25, 5
        s_add_u32 s25, s25, s21
        v_add_u32 v5, s25, v2
        v_lshlrev_b32 v5, 10, v5
        s_lshr_b32 s25, s20, 1
        s_add_u32 s25, s25, s22
        s_lshl_b32 s25, s25, 5
        v_lshl_add_u32 v5, v3, 3, v5
        v_add_u32 v5, s25, v5
        v_add_u32 v6, {hex(HB)}, v5
        """)
        for i in range(2):
            if is_w:
                a(f"v_add_u32 v7, {i*16*1024}, v5")
                a(f"buffer_load_dwordx2 v[{96+i*2}:{97+i*2}], v7, s[12:15], 0 offen")
            else:
                a(f"v_add_u32 v7, {i*16*1024}, v6")
                a(f"buffer_load_dwordx2 v[{96+i*2}:{97+i*2}], v7, s[8:11], 0 offen sc1")
        a("s_waitcnt vmcnt(0) lgkmcnt(0)")
        for i in range(2):
            for c in range(4):
                r0 = 16 + i*4 + c
                for v in range(1, 8):
                    a(f"v_add_f32 v{r0}, v{r0}, v{r0 + v*8}")
            r = 16 + i*4
            a(f"v_cvt_pk_bf16_f32 v90, v{r}, v{r+1}")
            a(f"v_cvt_pk_bf16_f32 v91, v{r+2}, v{r+3}")
            for j in range(2):
                a(f"v_lshlrev_b32 v92, 16, v{90+j}")
                a(f"v_and_b32 v93, 0xffff0000, v{90+j}")
                a(f"v_lshlrev_b32 v94, 16, v{96+i*2+j}")
                a(f"v_and_b32 v95, 0xffff0000, v{96+i*2+j}")
                a("v_add_f32 v92, v92, v94")
                a("v_add_f32 v93, v93, v95")
                a(f"v_cvt_pk_bf16_f32 v{100+i*2+j}, v92, v93")
            if is_w:
                a(f"v_add_u32 v7, {i*16*1024}, v6")
                a(f"buffer_store_dwordx2 v[{100+i*2}:{101+i*2}], v7, s[8:11], 0 offen sc1")
            else:
                a(f"v_add_u32 v7, {i*16*1024}, v5")
                a(f"buffer_store_dwordx2 v[{100+i*2}:{101+i*2}], v7, s[16:19], 0 offen")
    a.label(lW)
    a("s_sub_u32 s45, s45, 8")
    a(f"""
    s_lshl_b32 s21, s44, 3
    s_add_u32 s21, s21, s20
    s_lshl_b32 s21, s21, 2
    s_add_u32 s21, s21, {hex(FA)}
    """)
    wait_flag(a, 21, 16)
    a("s_barrier")
    splitk_stage(OB, 8192, WO, 16, 8, 128*1024, 1024, True)
    a(f"s_lshl_b32 s46, s44, 3\ns_add_u32 s46, s46, s45\ns_lshl_b32 s46, s46, 2\ns_add_u32 s46, s46, {hex(FH)}")
    set_flag(46)
    a(f"s_branch {lnext}")
    a.label(lF1)
    a("s_sub_u32 s45, s45, 16")
    a(f"""
    s_lshl_b32 s21, s44, 3
    s_add_u32 s21, s21, s20
    s_lshl_b32 s21, s21, 2
    s_add_u32 s21, s21, {hex(FH)}
    """)
    wait_flag(a, 21, 16)
    a("s_barrier")
    for i in range(8):
        a(f"s_lshl_b32 s21, s44, 6\ns_lshl_b32 s22, s20, 3\ns_add_u32 s21, s21, s22\ns_add_u32 s21, s21, {i}")
        a("v_mov_b32 v4, s21")
        a(f"s_lshl_b32 s22, s20, 3\ns_add_u32 s22, s22, {i}\ns_mul_i32 s22, s22, 1040")
        a("v_lshl_add_u32 v40, v1, 4, s22")
        emit_ln_row(a, 8, HB, 8, 0, 4, sc1=True, lds_addr=40)
    a("v_and_b32 v2, 15, v1\nv_lshrrev_b32 v3, 4, v1")
    a("s_waitcnt lgkmcnt(0)")
    a("s_barrier")
    a(f"""
    s_lshl_b32 s22, s45, 3
    s_add_u32 s22, s22, s20           ; fb
    s_mov_b32 s23, 1040
    v_mul_lo_u32 v4, v2, s23
    v_lshl_add_u32 v4, v3, 4, v4
    """)
    for mt in range(4):
        a(f"v_add_u32 v{8+mt}, {mt*16*1040}, v4")
    a("s_lshl_b32 s25, s22, 15")
    a("v_lshl_add_u32 v4, v1, 4, s25")
    a(f"v_add_u32 v12, {hex(WG)}, v4")
    a(f"v_add_u32 v13, {hex(WG+16384)}, v4")
    a(f"v_add_u32 v14, {hex(WU)}, v4")
    a(f"v_add_u32 v15, {hex(WU+16384)}, v4")
    a("s_mov_b32 s26, 0\ns_mov_b32 s27, 0")
    XF, WF, ACC = 16, 48, 80
    gemm_loop(a, 4, 4, 16, 8, True, [8,9,10,11], [12,13,14,15], XF, WF, ACC, 26, 27, 28, xlds=True)
    a(f"""
    s_lshl_b32 s21, s44, 6
    v_add_u32 v4, s21, v2
    s_mov_b32 s25, 3584
    v_mul_lo_u32 v4, v4, s25
    s_lshl_b32 s25, s22, 6
    v_lshl_add_u32 v4, v3, 3, v4
    v_add_u32 v4, s25, v4
    v_add_u32 v4, {hex(HH)}, v4
    """)
    for mt in range(4):
        for nt in range(2):
            cg = ACC + (nt*4+mt)*4
            cu = ACC + ((nt+2)*4+mt)*4
            o = 16 + nt*2
            for j in range(2):
                a(f"v_cvt_pk_bf16_f32 v20, v{cg+2*j}, v{cg+2*j+1}")
                a(f"v_cvt_pk_bf16_f32 v21, v{cu+2*j}, v{cu+2*j+1}")
                a("v_lshlrev_b32 v22, 16, v20")
                a("v_and_b32 v23, 0xffff0000, v20")
                a("v_lshlrev_b32 v24, 16, v21")
                a("v_and_b32 v25, 0xffff0000, v21")
                a("v_mul_f32 v22, v22, v24")
                a("v_mul_f32 v23, v23, v25")
                a(f"v_cvt_pk_bf16_f32 v{o+j}, v22, v23")
            a(f"buffer_store_dwordx2 v[{o}:{o+1}], v4, s[8:11], 0 offen offset:{nt*32} sc1")
            a("s_nop 1")
        if mt < 3:
            a(f"v_add_u32 v4, {16*3584}, v4")
    a(f"s_lshl_b32 s46, s44, 3\ns_add_u32 s46, s46, s45\ns_lshl_b32 s46, s46, 2\ns_add_u32 s46, s46, {hex(FF)}")
    set_flag(46)
    a(f"s_branch {lnext}")
    a.label(lF2)
    a("s_sub_u32 s45, s45, 23")
    a(f"""
    s_lshl_b32 s21, s44, 3
    s_add_u32 s22, s21, s20
    s_lshl_b32 s22, s22, 2
    s_add_u32 s22, s22, {hex(FF)}
    s_add_u32 s21, s21, s45
    s_lshl_b32 s21, s21, 2
    s_add_u32 s21, s21, {hex(FH)}
    s_cmp_lt_u32 s20, 7
    s_cselect_b32 s21, s22, s21
    """)
    wait_flag(a, 21, 16)
    a("s_barrier")
    splitk_stage(HH, 3584, WD, 8, 7, 1024, 32*1024, False)
    a("s_barrier")
    a.label(lnext)
    a(f"s_add_u32 s43, s43, {NW}")
    a(f"s_branch {la}")

def gen_mega(a):
    name = "mega_kernel"
    kernel_header(a, name)
    lend = a.newlabel("mend")
    lwk = a.newlabel("mwk")
    a(f"""
    s_cmp_ge_u32 s2, 256
    s_cbranch_scc1 {lend}
    s_load_dwordx2 s[4:5], s[0:1], {KA_WS}
    s_load_dwordx2 s[6:7], s[0:1], {KA_X}
    s_load_dwordx2 s[22:23], s[0:1], {KA_OUT}
    v_and_b32 v1, 63, v0
    v_lshrrev_b32 v2, 6, v0
    s_nop 0
    v_readfirstlane_b32 s20, v2
    s_waitcnt lgkmcnt(0)
    """)
    srd(a, 8, 4, WS_BYTES)
    srd(a, 12, 6, 2 * MB)
    srd(a, 16, 22, 2 * MB)
    a(f"""
    s_and_b32 s3, s2, 7
    s_lshr_b32 s21, s2, 3
    s_cmp_lg_u32 s3, 0
    s_cbranch_scc1 {lwk}
    s_mov_b32 s2, s21
    """)
    gen_rec_role(a, lend)
    a.label(lwk)
    a("s_mul_i32 s29, s21, 7\ns_add_u32 s29, s29, s3\ns_sub_u32 s29, s29, 1")
    gen_worker_role(a, lend)
    a.label(lend)
    a("s_endpgm")
    return kernel_desc(name, 256)
```

```python
import sys, os

NAME = "sequential_preLN__memory_aug_recurrent_mem_tr__glu_gated_bilinear__prompt"

MB = 1 << 20
XN   = 0
WQKV = 2 * MB
WO   = 14 * MB
WG   = 18 * MB
WU   = 20 * MB
WD   = 22 * MB
QK   = 24 * MB
VT   = 56 * MB
KM   = 72 * MB
VMT  = 76 * MB
OB   = 80 * MB
HB   = 96 * MB
HN   = 98 * MB
HH   = 100 * MB
M2   = 112 * MB
H1   = 128 * MB
WS_BYTES = 256 * MB

KA_X, KA_MEM0, KA_WQ, KA_WK, KA_WV, KA_WO, KA_SEG, KA_BX, KA_WG, KA_WU, KA_WD, KA_OUT, KA_DBG, KA_WS = [8*i for i in range(14)]

class Asm:
    def __init__(self):
        self.lines = []
        self.lbl = 0
    def __call__(self, s):
        for ln in s.strip("\n").split("\n"):
            self.lines.append("    " + ln.strip())
    def label(self, s):
        self.lines.append(s + ":")
    def newlabel(self, p="L"):
        self.lbl += 1
        return f".{p}{self.lbl}"
    def text(self):
        return "\n".join(self.lines) + "\n"

def srd(a, d, base_lo, nbytes):
    a(f"s_mov_b32 s{d}, s{base_lo}")
    a(f"s_and_b32 s{d+1}, s{base_lo+1}, 0xffff")
    a(f"s_mov_b32 s{d+2}, {hex(nbytes)}")
    a(f"s_mov_b32 s{d+3}, 0x00020000")

def kernel_header(a, name):
    a.lines.append(f".globl {name}")
    a.lines.append(".p2align 8")
    a.lines.append(f".type {name},@function")
    a.label(name)

def kernel_desc(name, vgpr, sgpr=102):
    acc = (vgpr + 3) // 4 * 4
    return f""".p2align 6
.amdhsa_kernel {name}
  .amdhsa_next_free_vgpr {vgpr}
  .amdhsa_next_free_sgpr {sgpr}
  .amdhsa_accum_offset {acc}
  .amdhsa_group_segment_fixed_size 0
  .amdhsa_kernarg_size 112
  .amdhsa_user_sgpr_count 2
  .amdhsa_user_sgpr_kernarg_segment_ptr 1
  .amdhsa_system_sgpr_workgroup_id_x 1
.end_amdhsa_kernel
"""

def allreduce16(a, op, r, t):
    for sh in (8, 4, 2, 1):
        a(f"s_nop 1")
        a(f"{op}_dpp v{t}, v{r}, v{r} row_ror:{sh} row_mask:0xf bank_mask:0xf")
        a(f"s_nop 1")
        a(f"v_mov_b32 v{r}, v{t}")

def allreduce_groups(a, op, r, t):
    a(f"v_mov_b32 v{t}, v{r}")
    a("s_nop 1")
    a(f"v_permlane16_swap_b32 v{r}, v{t}")
    a("s_nop 1")
    a(f"{op} v{r}, v{r}, v{t}")
    a(f"v_mov_b32 v{t}, v{r}")
    a("s_nop 1")
    a(f"v_permlane32_swap_b32 v{r}, v{t}")
    a("s_nop 1")
    a(f"{op} v{r}, v{r}, v{t}")

def emit_ln_row(a, s_src, src_off, s_dst, dst_off, vrow, sc1=False, lds_addr=None):
    a(f"""
    v_lshlrev_b32 v2, 10, v{vrow}
    v_lshl_add_u32 v2, v1, 4, v2
    v_add_u32 v3, {hex(src_off)}, v2
    buffer_load_dwordx4 v[8:11], v3, s[{s_src}:{s_src+3}], 0 offen{" sc1" if sc1 else ""}
    s_waitcnt vmcnt(0)
    """)
    for i in range(4):
        a(f"v_lshlrev_b32 v{12+2*i}, 16, v{8+i}")
        a(f"v_and_b32 v{13+2*i}, 0xffff0000, v{8+i}")
    a("v_add_f32 v20, v12, v13")
    for i in range(2, 8):
        a(f"v_add_f32 v20, v20, v{12+i}")
    allreduce16(a, "v_add_f32", 20, 21)
    allreduce_groups(a, "v_add_f32", 20, 21)
    a("v_mul_f32 v20, 0x3b000000, v20")
    for i in range(8):
        a(f"v_sub_f32 v{22+i}, v{12+i}, v20")
    a("v_mul_f32 v30, v22, v22")
    for i in range(1, 8):
        a(f"v_fmac_f32 v30, v{22+i}, v{22+i}")
    allreduce16(a, "v_add_f32", 30, 21)
    allreduce_groups(a, "v_add_f32", 30, 21)
    a("v_mul_f32 v30, 0x3b000000, v30")
    a("v_cvt_pk_bf16_f32 v31, v20, v30")
    a("v_lshlrev_b32 v20, 16, v31")
    a("v_and_b32 v30, 0xffff0000, v31")
    a("v_add_f32 v30, 0x3727c5ac, v30")
    a("v_cvt_pk_bf16_f32 v31, v30, v30")
    a("v_and_b32 v30, 0xffff0000, v31")
    a("v_sqrt_f32 v30, v30")
    a("s_nop 0")
    a("v_cvt_pk_bf16_f32 v31, v30, v30")
    a("v_and_b32 v30, 0xffff0000, v31")
    a("v_rcp_f32 v30, v30")
    a("s_nop 0")
    for i in range(8):
        a(f"v_sub_f32 v{22+i}, v{12+i}, v20")
    for i in range(4):
        a(f"v_cvt_pk_bf16_f32 v{8+i}, v{22+2*i}, v{23+2*i}")
    for i in range(4):
        a(f"v_lshlrev_b32 v{12+2*i}, 16, v{8+i}")
        a(f"v_and_b32 v{13+2*i}, 0xffff0000, v{8+i}")
    for i in range(8):
        a(f"v_mul_f32 v{12+i}, v{12+i}, v30")
    for i in range(4):
        a(f"v_cvt_pk_bf16_f32 v{8+i}, v{12+2*i}, v{13+2*i}")
    if lds_addr is not None:
        a(f"ds_write_b128 v{lds_addr}, v[8:11]")
    else:
        a(f"v_add_u32 v3, {hex(dst_off)}, v2")
        a(f"buffer_store_dwordx4 v[8:11], v3, s[{s_dst}:{s_dst+3}], 0 offen")

N_LN = 512
REPACK = [
    (KA_WQ, 512, 4096, WQKV + 0 * 4 * MB, 'nk'),
    (KA_WK, 512, 4096, WQKV + 1 * 4 * MB, 'nk'),
    (KA_WV, 512, 4096, WQKV + 2 * 4 * MB, 'nk'),
    (KA_WO, 4096, 512, WO, 'nk'),
    (KA_WG, 512, 1792, WG, 'nk'),
    (KA_WU, 512, 1792, WU, 'nk'),
    (KA_WD, 1792, 512, WD, 'kn'),
]
FILL_BYTES = 32 * MB + 64 * 8192
N_FILL = (32 * MB) // (256 * 64) + (64 * 8192) // (256 * 64)

def prep_grid():
    return N_LN + sum(K * N // 8 // 256 for _, K, N, _, _ in REPACK) + N_FILL + 4

def gen_prep(a):
    name = "prep_kernel"
    kernel_header(a, name)
    a(f"""
    s_load_dwordx2 s[4:5], s[0:1], {KA_WS}
    s_load_dwordx2 s[6:7], s[0:1], {KA_X}
    v_and_b32 v1, 63, v0
    v_lshrrev_b32 v4, 6, v0
    s_waitcnt lgkmcnt(0)
    """)
    srd(a, 8, 4, WS_BYTES)
    srd(a, 12, 6, 2 * MB)
    lnext = a.newlabel()
    a(f"s_cmp_ge_u32 s2, {N_LN}")
    a(f"s_cbranch_scc1 {lnext}")
    a("s_lshl_b32 s3, s2, 2")
    a("v_add_u32 v4, s3, v4")
    emit_ln_row(a, 12, 0, 8, XN, 4)
    a("s_endpgm")
    a.label(lnext)
    base = N_LN
    for (ka, K, N, dst, order) in REPACK:
        nwg = K * N // 8 // 256
        lnext = a.newlabel()
        a(f"s_cmp_ge_u32 s2, {base + nwg}")
        a(f"s_cbranch_scc1 {lnext}")
        a(f"s_load_dwordx2 s[6:7], s[0:1], {ka}")
        a(f"s_sub_u32 s3, s2, {base}")
        a("s_lshl_b32 s3, s3, 8")
        a("v_add_u32 v2, s3, v0")
        a("s_waitcnt lgkmcnt(0)")
        srd(a, 16, 6, K * N * 2)
        KK, NT = K // 32, N // 16
        a("v_lshrrev_b32 v3, 6, v2")
        if order == 'nk':
            sh = KK.bit_length() - 1
            assert 1 << sh == KK
            a(f"v_and_b32 v5, {KK-1}, v3")
            a(f"v_lshrrev_b32 v6, {sh}, v3")
        else:
            sh = NT.bit_length() - 1
            assert 1 << sh == NT
            a(f"v_and_b32 v6, {NT-1}, v3")
            a(f"v_lshrrev_b32 v5, {sh}, v3")
        a("v_and_b32 v7, 15, v1")
        a("v_lshl_add_u32 v6, v6, 4, v7")
        a("v_lshrrev_b32 v7, 4, v1")
        a("v_lshlrev_b32 v7, 3, v7")
        a("v_lshl_add_u32 v5, v5, 5, v7")
        a(f"s_mov_b32 s3, {N*2}")
        a("v_mul_lo_u32 v5, v5, s3")
        a("v_lshl_add_u32 v5, v6, 1, v5")
        for i in range(8):
            a(f"buffer_load_ushort v{8+i}, v5, s[16:19], 0 offen")
            if i < 7:
                a(f"v_add_u32 v5, {N*2}, v5")
        a("s_waitcnt vmcnt(0)")
        for i in range(4):
            a(f"v_lshl_or_b32 v{16+i}, v{9+2*i}, 16, v{8+2*i}")
        a("v_lshlrev_b32 v2, 4, v2")
        a(f"v_add_u32 v2, {hex(dst)}, v2")
        a("buffer_store_dwordx4 v[16:19], v2, s[8:11], 0 offen")
        a("s_endpgm")
        a.label(lnext)
        base += nwg
    lnext = a.newlabel()
    a(f"s_cmp_ge_u32 s2, {base + N_FILL}")
    a(f"s_cbranch_scc1 {lnext}")
    a(f"s_sub_u32 s3, s2, {base}")
    nh1 = (32 * MB) // (256 * 64)
    a("s_lshl_b32 s3, s3, 14")
    a(f"s_cmp_ge_u32 s3, {hex(32*MB)}")
    a(f"s_mov_b32 s17, {hex(H1)}")
    a(f"s_cselect_b32 s16, {hex(M2 + 8192 - 32*MB)}, s17")
    a("s_add_u32 s3, s3, s16")
    a("v_lshl_add_u32 v2, v0, 4, s3")
    a("v_mov_b32 v8, -1\nv_mov_b32 v9, -1\nv_mov_b32 v10, -1\nv_mov_b32 v11, -1")
    for i in range(4):
        a(f"buffer_store_dwordx4 v[8:11], v2, s[8:11], 0 offen offset:0")
        if i < 3:
            a("v_add_u32 v2, 0x1000, v2")
    a("s_endpgm")
    a.label(lnext)
    base += N_FILL
    lend = a.newlabel()
    a(f"s_cmp_ge_u32 s2, {base + 2}")
    a(f"s_cbranch_scc1 {lend}")
    a(f"s_load_dwordx2 s[6:7], s[0:1], {KA_MEM0}")
    a(f"s_sub_u32 s3, s2, {base}")
    a("s_lshl_b32 s3, s3, 8")
    a("v_add_u32 v2, s3, v0")
    a("s_waitcnt lgkmcnt(0)")
    srd(a, 16, 6, 8192)
    a("v_and_b32 v3, 7, v2")
    a("v_lshrrev_b32 v5, 3, v2")
    a("v_lshlrev_b32 v3, 10, v3")
    a("v_lshl_add_u32 v3, v5, 4, v3")
    a("buffer_load_dwordx4 v[8:11], v3, s[16:19], 0 offen")
    a("v_lshlrev_b32 v2, 4, v2")
    a(f"v_add_u32 v2, {hex(M2)}, v2")
    a("s_waitcnt vmcnt(0)")
    for i in range(4):
        a(f"v_min_u32 v{8+i}, -2, v{8+i}")
    a("buffer_store_dwordx4 v[8:11], v2, s[8:11], 0 offen")
    a("s_endpgm")
    a.label(lend)
    lend2 = a.newlabel()
    a(f"s_cmp_ge_u32 s2, {base + 4}")
    a(f"s_cbranch_scc1 {lend2}")
    a(f"s_sub_u32 s3, s2, {base + 2}")
    a("s_lshl_b32 s3, s3, 14")
    a(f"s_add_u32 s3, s3, {hex(113*MB)}")
    a("v_lshl_add_u32 v2, v0, 4, s3")
    a("v_mov_b32 v8, 0\nv_mov_b32 v9, 0\nv_mov_b32 v10, 0\nv_mov_b32 v11, 0")
    for i in range(4):
        a("buffer_store_dwordx4 v[8:11], v2, s[8:11], 0 offen")
        if i < 3:
            a("v_add_u32 v2, 0x1000, v2")
    a.label(lend2)
    a("s_endpgm")
    return kernel_desc(name, 48)

def gemm_loop(a, MT, NTL, KKN, s_ws, transposed, vX, vW, XF, WF, ACC, sKX, sKW, sCnt, wstride=1024, nW=1, xsc1=False, xlds=False, D=2):
    nX, nWt = MT, NTL
    assert KKN % D == 0
    def loads(st):
        for nt in range(nWt):
            r = WF + (st * nWt + nt) * 4
            a(f"buffer_load_dwordx4 v[{r}:{r+3}], v{vW[nt]}, s[{s_ws}:{s_ws+3}], s{sKW} offen")
        for mt in range(nX):
            r = XF + (st * nX + mt) * 4
            if xlds:
                a(f"ds_read_b128 v[{r}:{r+3}], v{vX[mt]}")
                a(f"v_add_u32 v{vX[mt]}, 64, v{vX[mt]}")
            else:
                a(f"buffer_load_dwordx4 v[{r}:{r+3}], v{vX[mt]}, s[{s_ws}:{s_ws+3}], s{sKX} offen" + (" sc1" if xsc1 else ""))
        a(f"s_add_u32 s{sKX}, s{sKX}, 64")
        a(f"s_add_u32 s{sKW}, s{sKW}, {wstride}")
    def mfmas(st):
        for nt in range(nWt):
            for mt in range(nX):
                c = ACC + (nt * nX + mt) * 4
                w = WF + (st * nWt + nt) * 4
                x = XF + (st * nX + mt) * 4
                if transposed:
                    a(f"v_mfma_f32_16x16x32_bf16 v[{c}:{c+3}], v[{w}:{w+3}], v[{x}:{x+3}], v[{c}:{c+3}]")
                else:
                    a(f"v_mfma_f32_16x16x32_bf16 v[{c}:{c+3}], v[{x}:{x+3}], v[{w}:{w+3}], v[{c}:{c+3}]")
    for i in range(nWt * nX * 4):
        a(f"v_mov_b32 v{ACC+i}, 0")
    for st in range(D - 1):
        loads(st)
    a(f"s_mov_b32 s{sCnt}, {KKN//D}")
    lp = a.newlabel("gl")
    a.label(lp)
    if xlds:
        wt = f"s_waitcnt vmcnt({(D-1)*nWt}) lgkmcnt({min(15,(D-1)*nX)})"
    else:
        wt = f"s_waitcnt vmcnt({(D-1)*(nX+nWt)})"
    for st in range(D):
        loads((st + D - 1) % D)
        a(wt)
        mfmas(st)
    a(f"s_sub_u32 s{sCnt}, s{sCnt}, 1")
    a(f"s_cmp_lg_u32 s{sCnt}, 0")
    a(f"s_cbranch_scc1 {lp}")
    a("s_waitcnt vmcnt(0) lgkmcnt(0)")
    a("s_nop 7\ns_nop 7")

def gen_gemm1(a):
    name = "gemm1_kernel"
    kernel_header(a, name)
    lend = a.newlabel()
    a(f"""
    s_cmp_ge_u32 s2, 1536
    s_cbranch_scc1 {lend}
    s_load_dwordx2 s[4:5], s[0:1], {KA_WS}
    v_and_b32 v1, 63, v0
    v_lshrrev_b32 v2, 6, v0
    s_nop 0
    v_readfirstlane_b32 s20, v2
    s_waitcnt lgkmcnt(0)
    """)
    srd(a, 8, 4, WS_BYTES)
    a("""
    s_and_b32 s21, s2, 15
    s_lshr_b32 s22, s2, 4
    s_and_b32 s23, s20, 1
    s_lshr_b32 s24, s20, 1
    s_lshl_b32 s21, s21, 7
    s_lshl_b32 s23, s23, 6
    s_add_u32 s21, s21, s23            ; m0
    s_lshl_b32 s22, s22, 3
    s_lshl_b32 s24, s24, 2
    s_add_u32 s22, s22, s24
    v_and_b32 v2, 15, v1
    v_lshrrev_b32 v3, 4, v1
    v_add_u32 v4, s21, v2
    v_lshlrev_b32 v4, 10, v4
    v_lshl_add_u32 v4, v3, 4, v4
    """)
    a(f"v_add_u32 v4, {hex(XN)}, v4")
    for mt in range(4):
        a(f"v_add_u32 v{8+mt}, {mt*16*1024}, v4")
    a("s_lshl_b32 s25, s22, 14")
    a(f"s_add_u32 s25, s25, {hex(WQKV)}")
    a("v_lshl_add_u32 v4, v1, 4, s25")
    for nt in range(4):
        a(f"v_add_u32 v{12+nt}, {nt*16*1024}, v4")
    a("s_mov_b32 s26, 0\ns_mov_b32 s27, 0")
    XF, WF, ACC = 16, 48, 80
    lv = a.newlabel()
    a("s_cmp_ge_u32 s22, 512")
    a(f"s_cbranch_scc1 {lv}")
    gemm_loop(a, 4, 4, 16, 8, True, [8,9,10,11], [12,13,14,15], XF, WF, ACC, 26, 27, 28)
    a("""
    v_add_u32 v4, s21, v2
    v_lshlrev_b32 v4, 14, v4
    s_lshl_b32 s25, s22, 5
    v_lshl_add_u32 v4, v3, 3, v4
    v_add_u32 v4, s25, v4
    """)
    a(f"v_add_u32 v4, {hex(QK)}, v4")
    for mt in range(4):
        for nt in range(4):
            c = ACC + (nt * 4 + mt) * 4
            a(f"v_cvt_pk_bf16_f32 v{16+(nt&1)*2}, v{c}, v{c+1}")
            a(f"v_cvt_pk_bf16_f32 v{17+(nt&1)*2}, v{c+2}, v{c+3}")
            a(f"buffer_store_dwordx2 v[{16+(nt&1)*2}:{17+(nt&1)*2}], v4, s[8:11], 0 offen offset:{nt*32}")
            a("s_nop 1")
        if mt < 3:
            a(f"v_add_u32 v4, {hex(16*16384)}, v4")
    a("s_endpgm")
    a.label(lv)
    gemm_loop(a, 4, 4, 16, 8, False, [8,9,10,11], [12,13,14,15], XF, WF, ACC, 26, 27, 28)
    a("""
    s_sub_u32 s25, s22, 512
    s_lshl_b32 s25, s25, 4
    v_add_u32 v4, s25, v2
    v_lshlrev_b32 v4, 12, v4
    s_lshl_b32 s25, s21, 1
    v_lshl_add_u32 v4, v3, 3, v4
    v_add_u32 v4, s25, v4
    """)
    a(f"v_add_u32 v4, {hex(VT)}, v4")
    for nt in range(4):
        for mt in range(4):
            c = ACC + (nt * 4 + mt) * 4
            a(f"v_cvt_pk_bf16_f32 v{16+(mt&1)*2}, v{c}, v{c+1}")
            a(f"v_cvt_pk_bf16_f32 v{17+(mt&1)*2}, v{c+2}, v{c+3}")
            a(f"buffer_store_dwordx2 v[{16+(mt&1)*2}:{17+(mt&1)*2}], v4, s[8:11], 0 offen offset:{mt*32}")
            a("s_nop 1")
        if nt < 3:
            a(f"v_add_u32 v4, {hex(16*4096)}, v4")
    a.label(lend)
    a("s_endpgm")
    return kernel_desc(name, 144)

KERNELS = []
def build():
    a = Asm()
    descs = []
    launches = []
    descs.append(gen_prep(a));  launches.append(("prep_kernel", prep_grid(), 256, 0))
    import gen2, gen3
    descs.append(gen3.gen_mega(a)); launches.append(("mega_kernel", 256, 512, gen3.MEGA_LDS))
    if os.environ.get("TAILK"):
        gen2.add_tail(a, descs, launches)
    hdr = "".join(f"; @launch kernel={k} grid=({g},1,1) block=({b},1,1) lds={l}\n" for k, g, b, l in launches)
    out = hdr + '.amdgcn_target "amdgcn-amd-amdhsa--gfx950"\n.text\n' + a.text()
    out += '.section .rodata,"a"\n' + "".join(descs)
    return out

if __name__ == "__main__":
    sys.path.insert(0, "gen")
    txt = build()
    open(f"cdna_kernels/{NAME}.s", "w").write(txt)
    print("written", len(txt))
```

```python
from gen import *
import gen, os
from gen2 import round_scale, softmax_regs, SCALE, LOG2E, POLL_CAP, DBGW

STAMP = bool(os.environ.get("STAMP"))
FL = 113 * MB
FKV, FQ, FR, XT = FL, FL + 4096, FL + 8192, FL + 24576
FA, FH, FF = FL + 16384, FL + 17408, FL + 25600
FL_BYTES = 32768

MEMI, KXI, QI, KI, VI, VXI, WOI = 0, 8192, 16384, 18432, 20480, 24576, 32768
OI = VI
RED = QI
MEGA_LDS = WOI + 131072

def stamp(a, idx, wave=0):
    if not STAMP: return
    l = a.newlabel("st")
    a(f"""
    s_cmp_lg_u32 s20, {wave}
    s_cbranch_scc1 {l}
    s_memtime s[50:51]
    s_lshl_b32 s52, s2, 12
    s_lshl_b32 s53, s30, 6
    s_add_u32 s52, s52, s53
    s_add_u32 s52, s52, {hex(DBGW + idx*4)}
    s_waitcnt lgkmcnt(0)
    s_mov_b64 s[54:55], exec
    s_mov_b64 exec, 1
    v_mov_b32 v0, s50
    v_mov_b32 v2, s52
    buffer_store_dword v0, v2, s[8:11], 0 offen
    s_mov_b64 exec, s[54:55]
    v_and_b32 v2, 15, v1
    """)
    a.label(l)

def chk(a, regs, tmp):
    a(f"v_max_u32 v{tmp}, v{regs[0]}, v{regs[1]}")
    for i in range(2, len(regs), 2):
        a(f"v_max3_u32 v{tmp}, v{tmp}, v{regs[i]}, v{regs[i+1]}")
    a(f"v_cmp_ne_u32 vcc, -1, v{tmp}")
    a("s_cmp_eq_u64 vcc, exec")

def wait_flag(a, saddr, vt):
    lp = a.newlabel("wf"); ld = a.newlabel("wfd")
    a(f"v_mov_b32 v{vt}, s{saddr}")
    a("s_mov_b32 s37, 0")
    a.label(lp)
    a(f"buffer_load_dword v{vt+1}, v{vt}, s[8:11], 0 offen sc1")
    a("s_waitcnt vmcnt(0)")
    a(f"v_readfirstlane_b32 s38, v{vt+1}")
    a("s_add_u32 s37, s37, 1")
    a("s_cmp_lg_u32 s38, 0")
    a(f"s_cbranch_scc1 {ld}")
    a("s_sleep 2")
    a(f"s_cmp_lt_u32 s37, {POLL_CAP*8}")
    a(f"s_cbranch_scc1 {lp}")
    a.label(ld)

def rec_loop(a, fast, lend):
    S1 = "" if fast else " sc1"
    def prefetch():
        a(f"s_lshl_b32 s21, s20, 11\ns_add_u32 s21, s21, {KXI}\ns_mov_b32 m0, s21\ns_nop 0")
        a("buffer_load_dwordx4 v15, s[8:11], s34 offen sc1 lds")
        a("s_add_u32 s21, s21, 1024\ns_mov_b32 m0, s21\nv_add_u32 v0, 64, v15")
        a("buffer_load_dwordx4 v0, s[8:11], s34 offen sc1 lds")
        a(f"s_lshl_b32 s21, s20, 10\ns_add_u32 s21, s21, {VXI}\ns_mov_b32 m0, s21\ns_nop 0")
        a("buffer_load_dwordx4 v16, s[8:11], s35 offen sc1 lds")
        a("s_add_u32 s21, s21, 4096\ns_mov_b32 m0, s21\nv_add_u32 v0, 0x40000, v16")
        a("buffer_load_dwordx4 v0, s[8:11], s35 offen sc1 lds")
    def wait_kv(seg_sreg_expr):
        pass
    lx = a.newlabel("ip")
    a("s_cmp_ge_u32 s20, 4")
    a(f"s_cbranch_scc1 {lx}")
    a(f"s_lshl_b32 s21, s2, 2\ns_add_u32 s21, s21, {hex(FKV)}")
    wait_flag(a, 21, 20)
    prefetch()
    a.label(lx)
    lstep = a.newlabel("step")
    a.label(lstep)
    stamp(a, 0, 4)
    lg = a.newlabel("g1"); lb1 = a.newlabel("b1")
    a("s_cmp_ge_u32 s20, 4")
    a(f"s_cbranch_scc1 {lg}")
    a(f"s_branch {lb1}")
    a.label(lg)
    lp = a.newlabel("p2"); ld0 = a.newlabel("p2a"); ld1 = a.newlabel("p2b"); lj = a.newlabel("p2j")
    def ld2(b):
        a(f"buffer_load_dwordx4 v[{20+b*8}:{23+b*8}], v8, s[8:11], s31 offen sc1")
        a(f"buffer_load_dwordx4 v[{24+b*8}:{27+b*8}], v8, s[8:11], s31 offen offset:1024 sc1")
    a("s_mov_b32 s36, 0")
    ld2(0)
    a.label(lp)
    ld2(1)
    a("s_waitcnt vmcnt(2)")
    chk(a, list(range(20, 28)), 36)
    a(f"s_cbranch_scc1 {ld0}")
    ld2(0)
    a("s_waitcnt vmcnt(2)")
    chk(a, list(range(28, 36)), 36)
    a(f"s_cbranch_scc1 {ld1}")
    a(f"s_add_u32 s36, s36, 1\ns_cmp_lt_u32 s36, {POLL_CAP}\ns_cbranch_scc1 {lp}\ns_branch {ld0}")
    a.label(ld1)
    a("ds_write_b128 v9, v[28:31]")
    a("ds_write_b128 v9, v[32:35] offset:1024")
    a(f"s_branch {lj}")
    a.label(ld0)
    a("ds_write_b128 v9, v[20:23]")
    a("ds_write_b128 v9, v[24:27] offset:1024")
    a.label(lj)
    a("s_waitcnt vmcnt(0)")
    a.label(lb1)
    stamp(a, 1, 4)
    a("s_waitcnt lgkmcnt(0)")
    a("s_barrier")
    stamp(a, 2, 4)
    lw2 = a.newlabel("wm2")
    a("s_cmp_lt_u32 s20, 4")
    a(f"s_cbranch_scc1 {lw2}")
    if os.environ.get("NOWARM"):
        a(f"s_branch {lw2}")
    a("v_lshlrev_b32 v0, 4, v1")
    a("v_sub_u32 v0, v11, v0")
    a("v_lshl_add_u32 v0, v1, 6, v0")
    a("buffer_load_dword v62, v0, s[8:11], s32 offen sc1")
    a("s_add_u32 s21, s31, 8192")
    a("v_lshlrev_b32 v0, 4, v1")
    a("v_sub_u32 v0, v8, v0")
    a("v_lshl_add_u32 v0, v1, 5, v0")
    a("buffer_load_dword v63, v0, s[8:11], s21 offen sc1")
    a.label(lw2)
    def memloop(body, accz):
        for i in accz:
            a(f"v_mov_b32 v{i}, 0")
        a("ds_read_b128 v[20:23], v4")
        a("ds_read_b128 v[24:27], v4 offset:512")
        a("ds_read_b128 v[28:31], v4 offset:1024")
        for kk in range(16):
            cur = 20 + (kk & 3) * 4
            nxt = 20 + ((kk + 3) & 3) * 4
            if kk < 13:
                a(f"ds_read_b128 v[{nxt}:{nxt+3}], v4 offset:{(kk+3)*512}")
                a("s_waitcnt lgkmcnt(3)")
            else:
                a(f"s_waitcnt lgkmcnt({15-kk})")
            body(kk, cur)
    def qk_body(kk, cur):
        a(f"v_mfma_f32_16x16x32_bf16 v[36:39], v[{64+kk*4}:{67+kk*4}], v[{cur}:{cur+3}], v[36:39]")
        a(f"v_mfma_f32_16x16x32_bf16 v[40:43], v[{128+kk*4}:{131+kk*4}], v[{cur}:{cur+3}], v[40:43]")
    memloop(qk_body, range(36, 44))
    a("s_nop 7\ns_nop 1")
    a("""
    v_cvt_pk_bf16_f32 v20, v36, v37
    v_cvt_pk_bf16_f32 v21, v38, v39
    v_cvt_pk_bf16_f32 v22, v40, v41
    v_cvt_pk_bf16_f32 v23, v42, v43
    """)
    a(f"ds_write_b64 v6, v[20:21] offset:{QI}")
    a(f"ds_write_b64 v6, v[22:23] offset:{KI}")
    a("buffer_store_dwordx2 v[22:23], v13, s[8:11], s33 offen sc1")
    def v_body(kk, cur):
        a(f"v_mfma_f32_16x16x32_bf16 v[44:47], v[{cur}:{cur+3}], v[{192+kk*4}:{195+kk*4}], v[44:47]")
    def v_finish(publish):
        a("s_nop 7\ns_nop 1")
        a("v_cvt_pk_bf16_f32 v18, v44, v45")
        a("v_cvt_pk_bf16_f32 v19, v46, v47")
        if publish:
            a("s_lshl_b32 s21, s20, 9")
            a("v_lshl_add_u32 v0, v1, 3, s21")
            a(f"ds_write_b64 v0, v[18:19] offset:{VI}")
        a("buffer_store_dwordx2 v[18:19], v14, s[8:11], s33 offen sc1")
    stamp(a, 3, 4)
    llast = a.newlabel("last")
    a("s_cmp_eq_u32 s30, 63")
    a(f"s_cbranch_scc1 {llast}")
    lnw2 = a.newlabel("nw2")
    a("s_cmp_ge_u32 s20, 4")
    a(f"s_cbranch_scc1 {lnw2}")
    a("s_waitcnt vmcnt(1)")
    a.label(lnw2)
    a("s_waitcnt lgkmcnt(0)")
    a("s_barrier")
    stamp(a, 4, 4)
    lnf = a.newlabel("nf")
    a("s_cmp_lg_u32 s20, 5")
    a(f"s_cbranch_scc1 {lnf}")
    a("s_cmp_eq_u32 s30, 0")
    a(f"s_cbranch_scc1 {lnf}")
    a(f"s_lshl_b32 s21, s30, 7\ns_lshl_b32 s22, s2, 2\ns_add_u32 s21, s21, s22\ns_add_u32 s21, s21, {hex(FR - 128)}")
    a("v_mov_b32 v36, s21\nv_mov_b32 v37, 1")
    a("s_mov_b64 s[54:55], exec\ns_mov_b64 exec, 1")
    a("buffer_store_dword v37, v36, s[8:11], 0 offen sc1")
    a("s_mov_b64 exec, s[54:55]")
    a.label(lnf)
    lsk3 = a.newlabel("sk3"); lp3 = a.newlabel("p3")
    a("s_cmp_lt_u32 s20, 4")
    a(f"s_cbranch_scc1 {lp3}")
    memloop(v_body, range(44, 48))
    v_finish(True)
    a("s_waitcnt lgkmcnt(0)")
    a("s_barrier")
    a(f"s_branch {lsk3}")
    a.label(lp3)
    for kk in range(4):
        a(f"ds_read_b128 v[{20+kk*4}:{23+kk*4}], v5 offset:{QI + kk*512}")
    a(f"v_lshlrev_b32 v0, 4, v1")
    seq = [(0, kk) for kk in range(4)] + [(1, kk) for kk in range(4)] + [(2, kk) for kk in range(4)]
    SA = 36
    def rd(i):
        t, kk = seq[i]
        r = 48 + (i & 3) * 4
        if t == 0:
            a(f"ds_read_b128 v[{r}:{r+3}], v5 offset:{KI + kk*512}")
        else:
            a(f"ds_read_b128 v[{r}:{r+3}], v0 offset:{KXI + ((t-1)*4+kk)*1024}")
    for i in range(3):
        rd(i)
    for i in range(12):
        a(f"v_mov_b32 v{SA+i}, 0")
    for i in range(12):
        t, kk = seq[i]
        r = 48 + (i & 3) * 4
        if i < 9:
            rd(i + 3)
            a("s_waitcnt lgkmcnt(3)")
        else:
            a(f"s_waitcnt lgkmcnt({11-i})")
        a(f"v_mfma_f32_16x16x32_bf16 v[{SA+t*4}:{SA+3+t*4}], v[{r}:{r+3}], v[{20+kk*4}:{23+kk*4}], v[{SA+t*4}:{SA+3+t*4}]")
    for i in range(4):
        a(f"ds_read_b128 v[{48+i*4}:{51+i*4}], v4 offset:{i*512}")
    for i in range(4):
        a(f"v_mov_b32 v{24+i}, 0")
    a("s_nop 4")
    sm = Asm()
    S = list(range(SA, SA + 12))
    round_scale(sm, S, 20)
    sm("v_mov_b32 v20, 0xff800000")
    for r in range(SA, SA + 4):
        sm(f"v_cndmask_b32 v{r}, v20, v{r}, s[40:41]")
    softmax_regs(sm, S, 21, 22, 23)
    lines = sm.lines
    step = max(1, len(lines) // 17)
    kk = 0
    for idx, ln in enumerate(lines):
        a.lines.append(ln)
        if kk < 16 and idx % step == step - 1:
            cur = 48 + (kk & 3) * 4
            a(f"s_waitcnt lgkmcnt({min(3, 15-kk)})")
            a(f"v_mfma_f32_16x16x32_bf16 v[24:27], v[{cur}:{cur+3}], v[{192+kk*4}:{195+kk*4}], v[24:27]")
            if kk + 4 < 16:
                a(f"ds_read_b128 v[{cur}:{cur+3}], v4 offset:{(kk+4)*512}")
            kk += 1
    assert kk == 16
    for i in range(6):
        a(f"v_cvt_pk_bf16_f32 v{28+i}, v{SA+2*i}, v{SA+1+2*i}")
    a("s_nop 3")
    a("v_cvt_pk_bf16_f32 v18, v24, v25")
    a("v_cvt_pk_bf16_f32 v19, v26, v27")
    a("buffer_store_dwordx2 v[18:19], v14, s[8:11], s33 offen sc1")
    a("s_barrier")
    a("s_lshl_b32 s21, s20, 9")
    a("v_lshl_add_u32 v0, v1, 3, s21")
    a(f"ds_read_b64 v[48:49], v0 offset:{VI + 2048}")
    a("s_lshl_b32 s21, s20, 10")
    a("v_lshlrev_b32 v0, 6, v2")
    a("v_lshl_add_u32 v0, v3, 3, v0")
    a("v_add_u32 v0, s21, v0")
    a(f"ds_read_b64 v[60:61], v0 offset:{VXI}")
    a(f"ds_read_b64 v[62:63], v0 offset:{VXI+32}")
    a(f"ds_read_b64 v[52:53], v0 offset:{VXI+4096}")
    a(f"ds_read_b64 v[54:55], v0 offset:{VXI+4096+32}")
    for i in range(8):
        a(f"v_mov_b32 v{36+i}, 0")
    a("s_waitcnt lgkmcnt(0)")
    a("v_mfma_f32_16x16x16_bf16 v[36:39], v[18:19], v[28:29], v[36:39]")
    a("v_mfma_f32_16x16x16_bf16 v[40:43], v[48:49], v[28:29], v[40:43]")
    a("s_nop 7")
    a("v_mfma_f32_16x16x32_bf16 v[36:39], v[60:63], v[30:33], v[36:39]")
    a("v_mfma_f32_16x16x32_bf16 v[40:43], v[52:55], v[30:33], v[40:43]")
    a("s_nop 7\ns_nop 1")
    a("v_cvt_pk_bf16_f32 v20, v36, v37")
    a("v_cvt_pk_bf16_f32 v21, v38, v39")
    a("v_cvt_pk_bf16_f32 v22, v40, v41")
    a("v_cvt_pk_bf16_f32 v23, v42, v43")
    a(f"ds_write_b64 v6, v[20:21] offset:{OI}")
    a(f"ds_write_b64 v6, v[22:23] offset:{OI + 1024}")
    a("s_waitcnt lgkmcnt(0)")
    a.label(lsk3)
    stamp(a, 5, 4)
    items = [(j, kk) for j in range(4) for kk in range(4)]
    RD = 5
    def rdw(i):
        j, kk = items[i]
        r = 36 + (i % RD) * 4
        a(f"ds_read_b128 v[{r}:{r+3}], v7 offset:{j*4096 + kk*1024}")
    for i in range(RD - 1):
        rdw(i)
    a("s_waitcnt vmcnt(2)")
    a("s_barrier")
    stamp(a, 6, 4)
    for kk in range(4):
        a(f"ds_read_b128 v[{20+kk*4}:{23+kk*4}], v5 offset:{OI + kk*512}")
    a("v_mov_b32 v0, v10")
    for i in range(16):
        j, kk = items[i]
        r = 36 + (i % RD) * 4
        acc = 56 if (j & 1) == 0 else 60
        if kk == 0:
            for t in range(4):
                a(f"v_mov_b32 v{acc+t}, 0")
        if i + RD - 1 < 16:
            rdw(i + RD - 1)
            a("s_waitcnt lgkmcnt(0)" if i == 0 else f"s_waitcnt lgkmcnt({RD-1})")
        else:
            a(f"s_waitcnt lgkmcnt({15-i})")
        a(f"v_mfma_f32_16x16x32_bf16 v[{acc}:{acc+3}], v[{r}:{r+3}], v[{20+kk*4}:{23+kk*4}], v[{acc}:{acc+3}]")
        if kk == 3:
            a("s_nop 7\ns_nop 1")
            for t in range(4):
                a(f"v_min_u32 v{acc+t}, -2, v{acc+t}")
            a(f"buffer_store_dwordx4 v[{acc}:{acc+3}], v0, s[8:11], s32 offen{S1}")
            a("v_add_u32 v0, 0x4000, v0")
    stamp(a, 7, 4)
    lg5 = a.newlabel("g5"); lb4 = a.newlabel("b4")
    a("s_cmp_ge_u32 s20, 4")
    a(f"s_cbranch_scc1 {lg5}")
    a("s_add_u32 s34, s34, 0x80000")
    a("s_add_u32 s35, s35, 64")
    a("s_add_u32 s21, s30, 1\ns_and_b32 s22, s21, 3\ns_cmp_lg_u32 s22, 0")
    lnk = a.newlabel("nk")
    a(f"s_cbranch_scc1 {lnk}")
    a(f"s_lshl_b32 s21, s21, 5\ns_lshl_b32 s22, s2, 2\ns_add_u32 s21, s21, s22\ns_add_u32 s21, s21, {hex(FKV)}")
    wait_flag(a, 21, 36)
    a.label(lnk)
    prefetch()
    a(f"s_branch {lb4}")
    a.label(lg5)
    lp = a.newlabel("p1"); ld0 = a.newlabel("p1a"); ld1 = a.newlabel("p1b"); lj = a.newlabel("p1j")
    def ld(b):
        for i in range(4):
            a(f"buffer_load_dwordx4 v[{20+b*16+i*4}:{23+b*16+i*4}], v11, s[8:11], s32 offen offset:{i*1024} sc1")
    a("s_mov_b32 s36, 0")
    ld(0)
    a.label(lp)
    ld(1)
    a("s_waitcnt vmcnt(4)")
    chk(a, list(range(20, 36)), 52)
    a(f"s_cbranch_scc1 {ld0}")
    ld(0)
    a("s_waitcnt vmcnt(4)")
    chk(a, list(range(36, 52)), 52)
    a(f"s_cbranch_scc1 {ld1}")
    a(f"s_add_u32 s36, s36, 1\ns_cmp_lt_u32 s36, {POLL_CAP}\ns_cbranch_scc1 {lp}\ns_branch {ld0}")
    for (lab, b) in ((ld1, 36), (ld0, 20)):
        a.label(lab)
        for i in range(4):
            a(f"v_add_f32 v{52+i}, v{b+i}, v{b+4+i}")
            a(f"v_add_f32 v{56+i}, v{b+8+i}, v{b+12+i}")
        for i in range(4):
            a(f"v_add_f32 v{52+i}, v{52+i}, v{56+i}")
        if lab == ld1:
            a(f"s_branch {lj}")
    a.label(lj)
    stamp(a, 8, 4)
    for i in range(4):
        a(f"v_mov_b32 v{56+i}, v{52+i}")
    a("s_nop 1")
    for i in range(4):
        a(f"v_permlane32_swap_b32 v{52+i}, v{56+i}")
    a("s_nop 1")
    for i in range(4):
        a(f"v_add_f32 v{52+i}, v{52+i}, v{56+i}")
    a("ds_write_b128 v12, v[52:55]")
    a("s_waitcnt lgkmcnt(0)")
    a.label(lb4)
    a("s_barrier")
    stamp(a, 9, 4)
    lnw = a.newlabel("nw")
    a("s_cmp_lg_u32 s20, 4")
    a(f"s_cbranch_scc1 {lnw}")
    a("v_lshlrev_b32 v0, 4, v1")
    for i in range(2):
        a(f"ds_read_b128 v[{52+i*4}:{55+i*4}], v0 offset:{RED + i*1024}")
    a("s_waitcnt lgkmcnt(0)")
    for i in range(4):
        a(f"v_add_f32 v{52+i}, v{52+i}, v{56+i}")
    for i in range(4):
        a(f"v_mov_b32 v{56+i}, v{52+i}")
    a("s_nop 1")
    for i in range(4):
        a(f"v_permlane32_swap_b32 v{52+i}, v{56+i}")
    a("s_nop 1")
    for i in range(4):
        a(f"v_add_f32 v{52+i}, v{52+i}, v{56+i}")
    a("v_cvt_pk_bf16_f32 v56, v52, v53")
    a("v_cvt_pk_bf16_f32 v57, v54, v55")
    a("v_min_u32 v56, -2, v56")
    a("v_min_u32 v57, -2, v57")
    a(f"buffer_store_dwordx2 v[56:57], v17, s[8:11], s31 offen{S1}")
    stamp(a, 10, 4)
    a.label(lnw)
    a(f"""
    s_add_u32 s30, s30, 1
    s_add_u32 s31, s31, 8192
    s_add_u32 s32, s32, 0x80000
    s_add_u32 s33, s33, 0x10000
    s_branch {lstep}
    """)
    a.label(llast)
    memloop(v_body, range(44, 48))
    v_finish(False)
    a("s_waitcnt vmcnt(0)")
    a("s_barrier")
    a("s_cmp_lg_u32 s20, 5")
    a(f"s_cbranch_scc1 {lend}")
    a(f"s_lshl_b32 s22, s2, 2\ns_add_u32 s21, s22, {hex(FR + 63*128)}")
    a("v_mov_b32 v36, s21\nv_mov_b32 v37, 1")
    a("s_mov_b64 exec, 1")
    a("buffer_store_dword v37, v36, s[8:11], 0 offen sc1")
    a("v_subrev_u32 v36, 128, v36")
    a("buffer_store_dword v37, v36, s[8:11], 0 offen sc1")
    a(f"s_branch {lend}")

def gen_rec_role(a, lend):
    a("""
    v_and_b32 v2, 15, v1          ; m
    v_lshrrev_b32 v3, 4, v1       ; g
    v_and_b32 v18, 7, v1          ; m&7
    """)
    a(f"""
    s_getreg_b32 s21, hwreg(HW_REG_XCC_ID)
    s_add_u32 s21, s21, 1
    s_lshl_b32 s22, s2, 2
    s_add_u32 s22, s22, {hex(XT)}
    v_mov_b32 v20, s22
    v_mov_b32 v21, s21
    s_mov_b64 exec, 1
    buffer_store_dword v21, v20, s[8:11], 0 offen sc1
    s_mov_b64 exec, -1
    """)
    a("s_lshl_b32 s21, s2, 3\ns_add_u32 s21, s21, s20\ns_lshl_b32 s21, s21, 14")
    a("v_lshl_add_u32 v19, v1, 4, s21")
    for j in range(3):
        a(f"v_add_u32 v20, {hex(WQKV + j*4*MB)}, v19")
        for kk in range(16):
            if kk % 4 == 0 and kk:
                a("v_add_u32 v20, 0x1000, v20")
            r = 64 + j*64 + kk*4
            a(f"buffer_load_dwordx4 v[{r}:{r+3}], v20, s[8:11], 0 offen offset:{(kk%4)*1024}")
    a("s_lshl_b32 s21, s20, 19")
    a("s_lshl_b32 s22, s2, 12")
    a("s_add_u32 s21, s21, s22")
    a(f"s_add_u32 s21, s21, {hex(WO)}")
    a("v_lshl_add_u32 v20, v1, 4, s21")
    a("s_lshl_b32 s22, s20, 14")
    a(f"s_add_u32 s22, s22, {WOI}")
    a("v_lshl_add_u32 v21, v1, 4, s22")
    for j in range(4):
        for kk in range(4):
            a(f"buffer_load_dwordx4 v[{24+kk*4}:{27+kk*4}], v20, s[8:11], 0 offen offset:{kk*1024}")
        a("s_waitcnt vmcnt(0)")
        for kk in range(4):
            a(f"ds_write_b128 v21, v[{24+kk*4}:{27+kk*4}] offset:{j*4096 + kk*1024}")
        if j < 3:
            a(f"v_add_u32 v20, {hex(128*1024)}, v20")
        a("s_waitcnt lgkmcnt(0)")
    a(f"""
    v_lshlrev_b32 v5, 3, v3
    v_add_lshl_u32 v5, v5, v18, 4        ; (g*8+(m&7))*16
    v_add_u32 v4, {MEMI}, v5
    s_and_b32 s21, s20, 1
    s_lshl_b32 s21, s21, 1
    v_lshrrev_b32 v6, 1, v3
    v_add_u32 v6, s21, v6
    v_lshlrev_b32 v6, 7, v6
    v_lshl_add_u32 v6, v18, 4, v6
    v_and_b32 v19, 1, v3
    v_lshl_add_u32 v6, v19, 3, v6
    s_lshr_b32 s21, s20, 1
    s_lshl_b32 s21, s21, 9
    v_add_u32 v6, s21, v6
    s_lshl_b32 s21, s20, 14
    s_add_u32 s21, s21, {WOI}
    v_lshl_add_u32 v7, v1, 4, s21
    s_and_b32 s23, s20, 3
    s_lshl_b32 s21, s23, 11
    v_lshl_add_u32 v9, v1, 4, s21
    v_add_u32 v8, {hex(M2)}, v9
    v_add_u32 v9, {MEMI}, v9
    s_lshl_b32 s21, s20, 16               ; (4w)*16384
    s_lshl_b32 s22, s2, 9
    s_add_u32 s21, s21, s22
    s_add_u32 s21, s21, {hex(H1)}
    v_add_u32 v10, s21, v5
    s_lshl_b32 s21, s2, 14
    s_lshl_b32 s22, s23, 12
    s_add_u32 s21, s21, s22
    s_add_u32 s21, s21, {hex(H1)}
    v_lshl_add_u32 v11, v1, 4, s21
    v_and_b32 v19, 31, v1
    s_lshl_b32 s21, s23, 9
    s_add_u32 s21, s21, {RED}
    v_lshl_add_u32 v12, v19, 4, s21
    s_lshl_b32 s21, s2, 8
    s_lshl_b32 s22, s20, 5
    s_add_u32 s21, s21, s22               ; (h*128+16w)*2
    v_lshlrev_b32 v13, 13, v18
    v_lshl_add_u32 v13, v3, 3, v13
    v_add_u32 v13, s21, v13
    v_add_u32 v13, {hex(KM)}, v13
    s_lshl_b32 s22, s21, 3                ; (h*128+16w)*16
    v_lshl_add_u32 v14, v2, 4, s22
    v_and_b32 v19, 1, v3
    v_lshl_add_u32 v14, v19, 3, v14
    v_add_u32 v14, {hex(VMT)}, v14
    s_lshr_b32 s21, s20, 1
    s_lshl_b32 s21, s21, 4
    v_add_u32 v15, s21, v2
    v_lshlrev_b32 v15, 14, v15
    s_lshl_b32 s21, s2, 8
    s_and_b32 s22, s20, 1
    s_lshl_b32 s22, s22, 7
    s_add_u32 s21, s21, s22
    s_add_u32 s21, s21, {hex(QK + 8192)}
    v_lshl_add_u32 v15, v3, 4, v15
    v_add_u32 v15, s21, v15
    s_lshl_b32 s21, s2, 7
    s_lshl_b32 s22, s20, 4
    s_add_u32 s21, s21, s22
    v_lshrrev_b32 v16, 2, v1
    v_add_u32 v16, s21, v16
    v_lshlrev_b32 v16, 12, v16
    v_and_b32 v19, 3, v1
    v_lshl_add_u32 v16, v19, 4, v16
    v_add_u32 v16, {hex(VT)}, v16
    v_lshrrev_b32 v19, 4, v1
    v_and_b32 v19, 1, v19
    v_lshl_add_u32 v17, v19, 3, v18
    v_lshlrev_b32 v17, 4, v17
    v_lshrrev_b32 v19, 3, v1
    v_and_b32 v19, 1, v19
    v_lshl_add_u32 v17, v19, 3, v17
    s_lshl_b32 s21, s2, 8
    s_add_u32 s21, s21, {hex(M2 + 8192)}
    v_add_u32 v17, s21, v17
    v_cmp_gt_u32 s[40:41], 2, v3
    s_mov_b32 s30, 0
    s_mov_b32 s31, 0
    s_mov_b32 s32, 0
    s_mov_b32 s33, 0
    s_mov_b32 s34, 0
    s_mov_b32 s35, 0
    """)
    lp = a.newlabel("xc")
    a(f"""
    v_and_b32 v20, 31, v1
    v_lshlrev_b32 v20, 2, v20
    v_add_u32 v20, {hex(XT)}, v20
    s_mov_b32 s36, 0
    """)
    a.label(lp)
    a(f"""
    buffer_load_dword v21, v20, s[8:11], 0 offen sc1
    s_add_u32 s36, s36, 1
    s_waitcnt vmcnt(0)
    v_cmp_eq_u32 vcc, 0, v21
    s_cmp_lt_u32 s36, {POLL_CAP}
    s_cselect_b64 s[44:45], vcc, 0
    s_cmp_lg_u64 s[44:45], 0
    s_cbranch_scc1 {lp}
    v_readfirstlane_b32 s21, v21
    s_nop 3
    v_cmp_ne_u32 vcc, s21, v21
    s_cmp_lg_u64 vcc, 0
    """)
    lslow = a.newlabel("slow")
    if os.environ.get("FORCESLOW"):
        a(f"s_branch {lslow}")
    a(f"s_cbranch_scc1 {lslow}")
    rec_loop(a, True, lend)
    a.label(lslow)
    rec_loop(a, False, lend)

def worker_gemm(a, s_nt0, s_m0, flag_s):
    a("s_barrier")
    a(f"""
    s_lshl_b32 s21, s20, 4
    s_add_u32 s22, s21, s{s_m0}
    s_lshl_b32 s22, s22, 10
    s_add_u32 s22, s22, {hex(XN)}
    v_lshl_add_u32 v4, v1, 4, s22
    s_mul_i32 s21, s21, 1040
    v_lshl_add_u32 v5, v1, 4, s21
    """)
    for half in range(2):
        for i in range(8):
            r = 16 + i*4
            if (half*8+i) % 4 == 0 and (half*8+i):
                a("v_add_u32 v4, 0x1000, v4")
            a(f"buffer_load_dwordx4 v[{r}:{r+3}], v4, s[8:11], 0 offen offset:{((half*8+i)%4)*1024}")
        for i in range(8):
            r = 16 + i*4
            a(f"s_waitcnt vmcnt({7-i})")
            a(f"ds_write_b128 v5, v[{r}:{r+3}] offset:{(half*8+i)*1040}")
    a("s_waitcnt lgkmcnt(0)")
    a("s_barrier")
    a(f"""
    s_lshl_b32 s25, s24, 1
    s_add_u32 s22, s{s_nt0}, s25
    s_mov_b32 s23, 1040
    v_mul_lo_u32 v4, v2, s23
    v_lshl_add_u32 v4, v3, 4, v4
    """)
    vX = [200+i for i in range(8)]
    for mt in range(8):
        a(f"v_add_u32 v{vX[mt]}, {mt*16*1040}, v4")
    a("s_lshl_b32 s25, s22, 14")
    a(f"s_add_u32 s25, s25, {hex(WQKV)}")
    a("v_lshl_add_u32 v4, v1, 4, s25")
    for nt in range(2):
        a(f"v_add_u32 v{12+nt}, {nt*16*1024}, v4")
    a("s_mov_b32 s26, 0\ns_mov_b32 s27, 0")
    XF, WF, ACC = 16, 80, 96
    lv = a.newlabel("wv"); ldn = a.newlabel("wdn")
    a("s_cmp_ge_u32 s22, 512")
    a(f"s_cbranch_scc1 {lv}")
    gemm_loop(a, 8, 2, 16, 8, True, vX, [12,13], XF, WF, ACC, 26, 27, 28, xlds=True)
    a(f"""
    v_add_u32 v4, s{s_m0}, v2
    v_lshlrev_b32 v4, 14, v4
    s_lshl_b32 s25, s22, 5
    v_lshl_add_u32 v4, v3, 3, v4
    v_add_u32 v4, s25, v4
    v_add_u32 v4, {hex(QK)}, v4
    """)
    for mt in range(8):
        for nt in range(2):
            c = ACC + (nt * 8 + mt) * 4
            a(f"v_cvt_pk_bf16_f32 v{16+nt*2}, v{c}, v{c+1}")
            a(f"v_cvt_pk_bf16_f32 v{17+nt*2}, v{c+2}, v{c+3}")
            a(f"buffer_store_dwordx2 v[{16+nt*2}:{17+nt*2}], v4, s[8:11], 0 offen offset:{nt*32} sc1")
            a("s_nop 1")
        if mt < 7:
            a(f"v_add_u32 v4, {hex(16*16384)}, v4")
    a(f"s_branch {ldn}")
    a.label(lv)
    gemm_loop(a, 8, 2, 16, 8, False, vX, [12,13], XF, WF, ACC, 26, 27, 28, xlds=True)
    a(f"""
    s_sub_u32 s25, s22, 512
    s_lshl_b32 s25, s25, 4
    v_add_u32 v4, s25, v2
    v_lshlrev_b32 v4, 12, v4
    s_lshl_b32 s25, s{s_m0}, 1
    v_lshl_add_u32 v4, v3, 3, v4
    v_add_u32 v4, s25, v4
    v_add_u32 v4, {hex(VT)}, v4
    """)
    for nt in range(2):
        for mt in range(8):
            c = ACC + (nt * 8 + mt) * 4
            a(f"v_cvt_pk_bf16_f32 v{16+(mt&1)*2}, v{c}, v{c+1}")
            a(f"v_cvt_pk_bf16_f32 v{17+(mt&1)*2}, v{c+2}, v{c+3}")
            a(f"buffer_store_dwordx2 v[{16+(mt&1)*2}:{17+(mt&1)*2}], v4, s[8:11], 0 offen offset:{mt*32} sc1")
            a("s_nop 1")
        if nt < 1:
            a(f"v_add_u32 v4, {hex(16*4096)}, v4")
    a.label(ldn)

def worker_attn(a):
    a(f"""
    v_and_b32 v4, 7, v1
    s_lshl_b32 s24, s23, 19
    s_lshl_b32 s25, s22, 8
    s_add_u32 s24, s24, s25
    s_add_u32 s24, s24, {hex(QK)}
    v_lshlrev_b32 v5, 14, v2
    v_lshl_add_u32 v5, v3, 4, v5
    v_add_u32 v5, s24, v5
    v_add_u32 v6, {hex(16*16384)}, v5
    s_lshl_b32 s24, s23, 16
    s_add_u32 s24, s24, s25
    s_add_u32 s24, s24, {hex(KM)}
    v_lshlrev_b32 v7, 13, v4
    v_lshl_add_u32 v7, v3, 4, v7
    v_add_u32 v7, s24, v7
    """)
    for tt in range(2):
        for kk in range(4):
            r = 16 + (tt*4+kk)*4
            a(f"buffer_load_dwordx4 v[{r}:{r+3}], v{5+tt}, s[8:11], 0 offen offset:{kk*64} sc1")
    for kk in range(4):
        r = 48 + kk*4
        a(f"buffer_load_dwordx4 v[{r}:{r+3}], v7, s[8:11], 0 offen offset:{kk*64} sc1")
    a("v_add_u32 v8, 0x2000, v5\nv_add_u32 v9, 0x2000, v6")
    for t in range(1, 3):
        for kk in range(4):
            r = 48 + (t*4+kk)*4
            a(f"buffer_load_dwordx4 v[{r}:{r+3}], v{7+t}, s[8:11], 0 offen offset:{kk*64} sc1")
    ACC = 96
    for i in range(24):
        a(f"v_mov_b32 v{ACC+i}, 0")
    a("s_waitcnt vmcnt(0)")
    for t in range(3):
        for tt in range(2):
            for kk in range(4):
                c = ACC + (t*2+tt)*4
                a(f"v_mfma_f32_16x16x32_bf16 v[{c}:{c+3}], v[{48+(t*4+kk)*4}:{51+(t*4+kk)*4}], v[{16+(tt*4+kk)*4}:{19+(tt*4+kk)*4}], v[{c}:{c+3}]")
    a("s_nop 7\ns_nop 1")
    a(f"""
    s_lshl_b32 s24, s23, 16
    s_lshl_b32 s25, s22, 11
    s_add_u32 s24, s24, s25
    s_add_u32 s24, s24, {hex(VMT)}
    v_and_b32 v10, 1, v3
    v_lshlrev_b32 v10, 3, v10
    v_lshl_add_u32 v10, v2, 4, v10
    v_add_u32 v10, s24, v10
    s_lshl_b32 s24, s22, 19
    s_lshl_b32 s25, s23, 6
    s_add_u32 s24, s24, s25
    s_add_u32 s24, s24, {hex(VT)}
    v_lshlrev_b32 v11, 12, v2
    v_lshl_add_u32 v11, v3, 3, v11
    v_add_u32 v11, s24, v11
    """)
    for et in range(8):
        r = 16 + et*6
        a(f"buffer_load_dwordx2 v[{r}:{r+1}], v10, s[8:11], 0 offen offset:{et*256} sc1")
        a(f"buffer_load_dwordx2 v[{r+2}:{r+3}], v11, s[8:11], 0 offen sc1")
        a(f"buffer_load_dwordx2 v[{r+4}:{r+5}], v11, s[8:11], 0 offen offset:32 sc1")
        if et < 7:
            a("v_add_u32 v11, 0x10000, v11")
    a("v_lshlrev_b32 v12, 2, v3")
    a("v_sub_u32 v12, v2, v12")
    a("v_cmp_gt_u32 s[40:41], 2, v3")
    a("v_mov_b32 v13, 0xff800000")
    P = 64
    for tt in range(2):
        S = [ACC + (t*2+tt)*4 + r for t in range(3) for r in range(4)]
        round_scale(a, S, 14)
        for r in range(4):
            a(f"v_cndmask_b32 v{S[r]}, v13, v{S[r]}, s[40:41]")
        for t in range(1, 3):
            for r in range(4):
                cst = (t-1)*16 + r - tt*16
                a(f"v_cmp_le_i32 vcc, {cst}, v12")
                a("s_nop 1")
                a(f"v_cndmask_b32 v{S[t*4+r]}, v13, v{S[t*4+r]}, vcc")
        softmax_regs(a, S, 14, 15, 90)
        for i in range(6):
            a(f"v_cvt_pk_bf16_f32 v{P+tt*6+i}, v{S[2*i]}, v{S[2*i+1]}")
    a(f"""
    s_lshl_b32 s24, s23, 18
    s_lshl_b32 s25, s22, 8
    s_add_u32 s24, s24, s25
    s_add_u32 s24, s24, {hex(OB)}
    v_lshlrev_b32 v12, 13, v2
    v_lshl_add_u32 v12, v3, 3, v12
    v_add_u32 v12, s24, v12
    v_add_u32 v13, {hex(16*8192)}, v12
    s_waitcnt vmcnt(0)
    """)
    OA = 80
    for et in range(8):
        r = 16 + et*6
        for tt in range(2):
            c = OA + tt*4
            for i in range(4):
                a(f"v_mov_b32 v{c+i}, 0")
            a("s_nop 1")
            a(f"v_mfma_f32_16x16x16_bf16 v[{c}:{c+3}], v[{r}:{r+1}], v[{P+tt*6}:{P+tt*6+1}], v[{c}:{c+3}]")
            a("s_nop 7")
            a(f"v_mfma_f32_16x16x32_bf16 v[{c}:{c+3}], v[{r+2}:{r+5}], v[{P+tt*6+2}:{P+tt*6+5}], v[{c}:{c+3}]")
        a("s_nop 7\ns_nop 1")
        for tt in range(2):
            c = OA + tt*4
            a(f"v_cvt_pk_bf16_f32 v{88+tt*2}, v{c}, v{c+1}")
            a(f"v_cvt_pk_bf16_f32 v{89+tt*2}, v{c+2}, v{c+3}")
            a(f"buffer_store_dwordx2 v[{88+tt*2}:{89+tt*2}], v{12+tt}, s[8:11], 0 offen offset:{et*32} sc1")
        a("s_nop 1")

NW = 224
def gen_worker_role(a, lend):
    a("""
    v_and_b32 v2, 15, v1
    v_lshrrev_b32 v3, 4, v1
    s_and_b32 s24, s20, 3
    s_lshr_b32 s42, s20, 2         ; half
    s_mov_b32 s43, s29
    """)
    lt = a.newlabel("gt"); lq = a.newlabel("gq"); lgo = a.newlabel("ggo"); ldone = a.newlabel("gdone")
    a.label(lt)
    a("s_cmp_ge_u32 s43, 768")
    a(f"s_cbranch_scc1 {ldone}")
    a("s_cmp_ge_u32 s43, 512")
    a(f"s_cbranch_scc1 {lq}")
    a(f"""
    s_lshr_b32 s44, s43, 5         ; mb
    s_and_b32 s45, s43, 31         ; h
    s_lshl_b32 s46, s45, 3         ; h*8 tiles
    s_lshl_b32 s47, s42, 8         ; half*256 : k -> 256.., v -> 512..
    s_add_u32 s46, s46, s47
    s_add_u32 s46, s46, 256        ; nt0
    s_lshl_b32 s47, s44, 7         ; m0
    s_lshl_b32 s48, s43, 2
    s_add_u32 s48, s48, {hex(FKV)}
    s_branch {lgo}
    """)
    a.label(lq)
    a(f"""
    s_sub_u32 s45, s43, 512
    s_lshr_b32 s44, s45, 4         ; mb
    s_and_b32 s45, s45, 15
    s_lshl_b32 s45, s45, 1
    s_add_u32 s45, s45, s42        ; h
    s_lshl_b32 s46, s45, 3         ; nt0
    s_lshl_b32 s47, s44, 7
    s_lshl_b32 s48, s44, 5
    s_add_u32 s48, s48, s45
    s_lshl_b32 s48, s48, 2
    s_add_u32 s48, s48, {hex(FQ)}
    """)
    a.label(lgo)
    worker_gemm(a, 46, 47, 48)
    a("s_waitcnt vmcnt(0)")
    a("s_barrier")
    lnf = a.newlabel("gnf")
    a("s_cmp_lg_u32 s24, 0")
    a(f"s_cbranch_scc1 {lnf}")
    a("s_cmp_ge_u32 s43, 512")
    lyes = a.newlabel("gy")
    a(f"s_cbranch_scc1 {lyes}")
    a("s_cmp_lg_u32 s42, 0")
    a(f"s_cbranch_scc1 {lnf}")
    a.label(lyes)
    a("v_mov_b32 v4, s48\nv_mov_b32 v5, 1")
    a("s_mov_b64 exec, 1")
    a("buffer_store_dword v5, v4, s[8:11], 0 offen sc1")
    a("s_mov_b64 exec, -1")
    a.label(lnf)
    a(f"s_add_u32 s43, s43, {NW}")
    a(f"s_branch {lt}")
    a.label(ldone)
    la = a.newlabel("pt"); lA = a.newlabel("pA"); lW = a.newlabel("pW"); lF1 = a.newlabel("pF1"); lF2 = a.newlabel("pF2"); lnext = a.newlabel("pn")
    lsa = [a.newlabel("sa") for _ in range(4)]

    a(f"""
    s_mov_b32 s49, 0
    s_mov_b32 s43, s29
    s_mov_b32 s42, 40
    s_mov_b32 s39, 256
    s_cmp_lt_u32 s29, 40
    s_cbranch_scc1 {la}
    s_mov_b32 s49, 1
    s_sub_u32 s43, s29, 40
    s_mov_b32 s42, 104
    s_mov_b32 s39, 1024
    s_cmp_lt_u32 s29, 144
    s_cbranch_scc1 {la}
    s_mov_b32 s49, 2
    s_sub_u32 s43, s29, 144
    s_mov_b32 s42, 40
    s_mov_b32 s39, 896
    s_cmp_lt_u32 s29, 184
    s_cbranch_scc1 {la}
    s_mov_b32 s49, 3
    s_sub_u32 s43, s29, 184
    s_mov_b32 s42, 40
    s_mov_b32 s39, 1024
    """)
    a.label(la)
    a("s_cmp_ge_u32 s43, s39")
    a(f"s_cbranch_scc1 {lend}")
    a(f"""
    s_lshr_b32 s44, s43, 2
    s_and_b32 s45, s43, 3
    s_cmp_eq_u32 s49, 0
    s_cbranch_scc1 {lA}
    s_lshr_b32 s44, s43, 4
    s_and_b32 s45, s43, 15
    s_cmp_eq_u32 s49, 1
    s_cbranch_scc1 {lW}
    s_cmp_eq_u32 s49, 3
    s_cbranch_scc1 {lF2}
    s_mul_i32 s44, s43, 4682
    s_lshr_b32 s44, s44, 16
    s_mul_i32 s45, s44, 14
    s_sub_u32 s45, s43, s45
    s_branch {lF1}
    """)
    def set_flag(sreg):
        l = a.newlabel("sf")
        a("s_waitcnt vmcnt(0)")
        a("s_barrier")
        a("s_cmp_lg_u32 s20, 0")
        a(f"s_cbranch_scc1 {l}")
        a(f"v_mov_b32 v4, s{sreg}\nv_mov_b32 v5, 1")
        a("s_mov_b64 exec, 1")
        a("buffer_store_dword v5, v4, s[8:11], 0 offen sc1")
        a("s_mov_b64 exec, -1")
        a.label(l)
    a.label(lA)
    a(f"""
    s_mov_b32 s23, s44               ; s
    s_lshl_b32 s46, s23, 2
    s_add_u32 s46, s46, s45
    s_lshl_b32 s46, s46, 2
    s_add_u32 s46, s46, {hex(FA)}
    s_lshl_b32 s22, s45, 3
    s_add_u32 s22, s22, s20          ; h
    s_lshl_b32 s21, s23, 5
    s_add_u32 s21, s21, s22
    s_lshl_b32 s21, s21, 2
    s_add_u32 s21, s21, {hex(FR)}
    """)
    wait_flag(a, 21, 16)
    a(f"""
    s_lshr_b32 s21, s23, 2
    s_lshl_b32 s21, s21, 5
    s_add_u32 s21, s21, s22
    s_lshl_b32 s21, s21, 2
    s_add_u32 s47, s21, {hex(FQ)}
    s_add_u32 s21, s21, {hex(FKV)}
    """)
    wait_flag(a, 21, 16)
    wait_flag(a, 47, 16)
    worker_attn(a)
    set_flag(46)
    a(f"s_branch {lnext}")

    def splitk_stage(A_off, lda, W_off, kk_per_wave, nwaves, w_nt_stride, w_kk_stride, is_w):
        a(f"""
        s_lshl_b32 s21, s44, 5            ; m0
        s_lshl_b32 s22, s45, 1            ; nt0
        v_add_u32 v4, s21, v2
        s_mov_b32 s23, {lda}
        v_mul_lo_u32 v4, v4, s23
        v_lshl_add_u32 v4, v3, 4, v4
        v_add_u32 v4, {hex(A_off)}, v4
        """)
        for mt in range(2):
            a(f"v_add_u32 v{8+mt}, {mt*16*lda}, v4")
        a(f"s_mul_i32 s25, s22, {w_nt_stride}")
        a(f"s_add_u32 s25, s25, {hex(W_off)}")
        a("v_lshl_add_u32 v4, v1, 4, s25")
        for nt in range(2):
            a(f"v_add_u32 v{12+nt}, {nt*w_nt_stride}, v4")
        a(f"s_mul_i32 s26, s20, {kk_per_wave*64}")
        a(f"s_mul_i32 s27, s20, {kk_per_wave*w_kk_stride}")
        XF, WF, ACC = 16, 48, 80
        lz = a.newlabel("skz"); lr = a.newlabel("skr")
        if nwaves < 8:
            a(f"s_cmp_ge_u32 s20, {nwaves}")
            a(f"s_cbranch_scc1 {lz}")
        gemm_loop(a, 2, 2, kk_per_wave, 8, True, [8,9], [12,13], XF, WF, ACC, 26, 27, 28, wstride=w_kk_stride, xsc1=True, D=4)
        if nwaves < 8:
            a(f"s_branch {lr}")
            a.label(lz)
            for i in range(16):
                a(f"v_mov_b32 v{ACC+i}, 0")
            a.label(lr)
        a("s_lshl_b32 s25, s20, 12")
        a("v_lshl_add_u32 v4, v1, 4, s25")
        for q in range(4):
            a(f"ds_write_b128 v4, v[{ACC+q*4}:{ACC+q*4+3}] offset:{q*1024}")
        a("s_waitcnt lgkmcnt(0)")
        a("s_barrier")
        lsk = a.newlabel("sks")
        a("s_cmp_ge_u32 s20, 4")
        a(f"s_cbranch_scc1 {lsk}")
        a("s_lshl_b32 s25, s20, 10")
        a("v_lshl_add_u32 v4, v1, 4, s25")
        for v in range(8):
            r = 16 + v*4
            a(f"ds_read_b128 v[{r}:{r+3}], v4 offset:{v*4096}")
        a(f"""
        s_and_b32 s25, s20, 1
        s_lshl_b32 s25, s25, 4
        s_add_u32 s25, s25, s21
        v_add_u32 v5, s25, v2
        v_lshlrev_b32 v5, 10, v5
        s_lshr_b32 s25, s20, 1
        s_add_u32 s25, s25, s22
        s_lshl_b32 s25, s25, 5
        v_lshl_add_u32 v5, v3, 3, v5
        v_add_u32 v5, s25, v5
        v_add_u32 v6, {hex(HB)}, v5
        """)
        if is_w:
            a("buffer_load_dwordx2 v[96:97], v5, s[12:15], 0 offen")
        else:
            a("buffer_load_dwordx2 v[96:97], v6, s[8:11], 0 offen sc1")
        a("s_waitcnt vmcnt(0) lgkmcnt(0)")
        for c in range(4):
            for v in range(1, 8):
                a(f"v_add_f32 v{16+c}, v{16+c}, v{16+c+v*4}")
        a("v_cvt_pk_bf16_f32 v90, v16, v17")
        a("v_cvt_pk_bf16_f32 v91, v18, v19")
        for j in range(2):
            a(f"v_lshlrev_b32 v92, 16, v{90+j}")
            a(f"v_and_b32 v93, 0xffff0000, v{90+j}")
            a(f"v_lshlrev_b32 v94, 16, v{96+j}")
            a(f"v_and_b32 v95, 0xffff0000, v{96+j}")
            a("v_add_f32 v92, v92, v94")
            a("v_add_f32 v93, v93, v95")
            a(f"v_cvt_pk_bf16_f32 v{100+j}, v92, v93")
        if is_w:
            a("buffer_store_dwordx2 v[100:101], v6, s[8:11], 0 offen sc1")
        else:
            a("buffer_store_dwordx2 v[100:101], v5, s[16:19], 0 offen")
        a.label(lsk)
    a.label(lW)
    a(f"""
    s_and_b32 s22, s20, 3
    s_lshl_b32 s21, s44, 2
    s_add_u32 s21, s21, s22
    s_lshl_b32 s21, s21, 2
    s_add_u32 s21, s21, {hex(FA)}
    """)
    wait_flag(a, 21, 16)
    a("s_barrier")
    splitk_stage(OB, 8192, WO, 16, 8, 128*1024, 1024, True)
    a(f"s_lshl_b32 s46, s44, 4\ns_add_u32 s46, s46, s45\ns_lshl_b32 s46, s46, 2\ns_add_u32 s46, s46, {hex(FH)}")
    set_flag(46)
    a(f"s_branch {lnext}")
    a.label(lF1)
    a(f"""
    s_lshl_b32 s21, s44, 4
    s_add_u32 s21, s21, s20
    s_lshl_b32 s21, s21, 2
    s_add_u32 s21, s21, {hex(FH)}
    """)
    wait_flag(a, 21, 16)
    a("s_add_u32 s21, s21, 32")
    wait_flag(a, 21, 16)
    a("s_barrier")
    for i in range(4):
        a(f"s_lshl_b32 s21, s44, 5\ns_lshl_b32 s22, s20, 2\ns_add_u32 s21, s21, s22\ns_add_u32 s21, s21, {i}")
        a("v_mov_b32 v4, s21")
        a(f"s_lshl_b32 s22, s20, 2\ns_add_u32 s22, s22, {i}\ns_mul_i32 s22, s22, 1040")
        a("v_lshl_add_u32 v40, v1, 4, s22")
        emit_ln_row(a, 8, HB, 8, 0, 4, sc1=True, lds_addr=40)
    a("v_and_b32 v2, 15, v1\nv_lshrrev_b32 v3, 4, v1")
    a("s_waitcnt lgkmcnt(0)")
    a("s_barrier")
    a(f"""
    s_lshl_b32 s22, s45, 3
    s_add_u32 s22, s22, s20
    s_mov_b32 s23, 1040
    v_mul_lo_u32 v4, v2, s23
    v_lshl_add_u32 v4, v3, 4, v4
    """)
    for mt in range(2):
        a(f"v_add_u32 v{8+mt}, {mt*16*1040}, v4")
    a("s_lshl_b32 s25, s22, 14")
    a("v_lshl_add_u32 v4, v1, 4, s25")
    a(f"v_add_u32 v12, {hex(WG)}, v4")
    a(f"v_add_u32 v13, {hex(WU)}, v4")
    a("s_mov_b32 s26, 0\ns_mov_b32 s27, 0")
    XF, WF, ACC = 16, 48, 80
    gemm_loop(a, 2, 2, 16, 8, True, [8,9], [12,13], XF, WF, ACC, 26, 27, 28, xlds=True, D=4)
    a(f"""
    s_lshl_b32 s21, s44, 5
    v_add_u32 v4, s21, v2
    s_mov_b32 s25, 3584
    v_mul_lo_u32 v4, v4, s25
    s_lshl_b32 s25, s22, 5
    v_lshl_add_u32 v4, v3, 3, v4
    v_add_u32 v4, s25, v4
    v_add_u32 v4, {hex(HH)}, v4
    """)
    for mt in range(2):
        cg = ACC + mt*4
        cu = ACC + (2+mt)*4
        o = 16 + mt*2
        for j in range(2):
            a(f"v_cvt_pk_bf16_f32 v20, v{cg+2*j}, v{cg+2*j+1}")
            a(f"v_cvt_pk_bf16_f32 v21, v{cu+2*j}, v{cu+2*j+1}")
            a("v_lshlrev_b32 v22, 16, v20")
            a("v_and_b32 v23, 0xffff0000, v20")
            a("v_lshlrev_b32 v24, 16, v21")
            a("v_and_b32 v25, 0xffff0000, v21")
            a("v_mul_f32 v22, v22, v24")
            a("v_mul_f32 v23, v23, v25")
            a(f"v_cvt_pk_bf16_f32 v{o+j}, v22, v23")
        a(f"buffer_store_dwordx2 v[{o}:{o+1}], v4, s[8:11], 0 offen sc1")
        if mt < 1:
            a(f"v_add_u32 v4, {16*3584}, v4")
    a(f"s_lshl_b32 s46, s44, 4\ns_add_u32 s46, s46, s45\ns_lshl_b32 s46, s46, 2\ns_add_u32 s46, s46, {hex(FF)}")
    set_flag(46)
    a(f"s_branch {lnext}")
    a.label(lF2)
    a(f"""
    s_lshl_b32 s21, s44, 4
    s_add_u32 s22, s21, s20
    s_lshl_b32 s22, s22, 2
    s_add_u32 s22, s22, {hex(FF)}
    """)
    wait_flag(a, 22, 16)
    a(f"""
    s_add_u32 s22, s22, 32
    s_add_u32 s21, s21, s45
    s_lshl_b32 s21, s21, 2
    s_add_u32 s21, s21, {hex(FH)}
    s_cmp_lt_u32 s20, 6
    s_cselect_b32 s21, s22, s21
    """)
    wait_flag(a, 21, 16)
    a("s_barrier")
    splitk_stage(HH, 3584, WD, 8, 7, 1024, 32*1024, False)
    a("s_barrier")
    a.label(lnext)
    a("s_add_u32 s43, s43, s42")
    a(f"s_branch {la}")

def gen_mega(a):
    name = "mega_kernel"
    kernel_header(a, name)
    lend = a.newlabel("mend")
    lwk = a.newlabel("mwk")
    lexit = a.newlabel("mexit")
    a(f"""
    s_cmp_ge_u32 s2, 256
    s_cbranch_scc1 {lexit}
    s_load_dwordx2 s[4:5], s[0:1], {KA_WS}
    s_load_dwordx2 s[6:7], s[0:1], {KA_X}
    s_load_dwordx2 s[22:23], s[0:1], {KA_OUT}
    v_and_b32 v1, 63, v0
    v_lshrrev_b32 v2, 6, v0
    s_nop 0
    v_readfirstlane_b32 s20, v2
    s_waitcnt lgkmcnt(0)
    """)
    srd(a, 8, 4, WS_BYTES)
    srd(a, 12, 6, 2 * MB)
    srd(a, 16, 22, 2 * MB)
    if STAMP:
        a("s_mov_b32 s99, s2\ns_memrealtime s[50:51]\ns_waitcnt lgkmcnt(0)\ns_mov_b32 s98, s50")
    a(f"""
    s_and_b32 s3, s2, 7
    s_lshr_b32 s21, s2, 3
    s_cmp_lg_u32 s3, 0
    s_cbranch_scc1 {lwk}
    s_mov_b32 s2, s21
    """)
    gen_rec_role(a, lend)
    a.label(lwk)
    a("s_mul_i32 s29, s21, 7\ns_add_u32 s29, s29, s3\ns_sub_u32 s29, s29, 1")
    gen_worker_role(a, lend)
    a.label(lend)
    if STAMP:
        a(f"""
        s_memrealtime s[50:51]
        s_lshl_b32 s52, s99, 3
        s_add_u32 s52, s52, {hex(DBGW + (1<<20))}
        s_waitcnt lgkmcnt(0)
        s_mov_b64 exec, 1
        v_mov_b32 v0, s50
        v_mov_b32 v2, s52
        buffer_store_dword v0, v2, s[8:11], 0 offen
        v_mov_b32 v0, s98
        buffer_store_dword v0, v2, s[8:11], 0 offen offset:4
        """)
    a.label(lexit)
    a("s_endpgm")
    return kernel_desc(name, 256)
```

```python
from gen import *
import gen, os
from gen2 import round_scale, softmax_regs, SCALE, LOG2E, POLL_CAP, DBGW

STAMP = bool(os.environ.get("STAMP"))
FL = 113 * MB
FKV, FQ, FR, XT = FL, FL + 4096, FL + 8192, FL + 24576
FA, FH, FF = FL + 16384, FL + 17408, FL + 25600
FL_BYTES = 32768

MEMI, KXI, QI, KI, VI, VXI, WOI = 0, 8192, 16384, 18432, 20480, 24576, 32768
OI = VI
RED = QI
MEGA_LDS = WOI + 131072

def stamp(a, idx, wave=0):
    if not STAMP: return
    l = a.newlabel("st")
    a(f"""
    s_cmp_lg_u32 s20, {wave}
    s_cbranch_scc1 {l}
    s_memtime s[50:51]
    s_lshl_b32 s52, s2, 12
    s_lshl_b32 s53, s30, 6
    s_add_u32 s52, s52, s53
    s_add_u32 s52, s52, {hex(DBGW + idx*4)}
    s_waitcnt lgkmcnt(0)
    s_mov_b64 s[54:55], exec
    s_mov_b64 exec, 1
    v_mov_b32 v0, s50
    v_mov_b32 v2, s52
    buffer_store_dword v0, v2, s[8:11], 0 offen
    s_mov_b64 exec, s[54:55]
    v_and_b32 v2, 15, v1
    """)
    a.label(l)

def chk(a, regs, tmp):
    a(f"v_max_u32 v{tmp}, v{regs[0]}, v{regs[1]}")
    for i in range(2, len(regs), 2):
        a(f"v_max3_u32 v{tmp}, v{tmp}, v{regs[i]}, v{regs[i+1]}")
    a(f"v_cmp_ne_u32 vcc, -1, v{tmp}")
    a("s_cmp_eq_u64 vcc, exec")

def wait_flag(a, saddr, vt):
    lp = a.newlabel("wf"); ld = a.newlabel("wfd")
    a(f"v_mov_b32 v{vt}, s{saddr}")
    a("s_mov_b32 s37, 0")
    a.label(lp)
    a(f"buffer_load_dword v{vt+1}, v{vt}, s[8:11], 0 offen sc1")
    a("s_waitcnt vmcnt(0)")
    a(f"v_readfirstlane_b32 s38, v{vt+1}")
    a("s_add_u32 s37, s37, 1")
    a("s_cmp_lg_u32 s38, 0")
    a(f"s_cbranch_scc1 {ld}")
    a("s_sleep 2")
    a(f"s_cmp_lt_u32 s37, {POLL_CAP*8}")
    a(f"s_cbranch_scc1 {lp}")
    a.label(ld)

def rec_loop(a, fast, lend):
    S1 = "" if fast else " sc1"
    def prefetch():
        a(f"s_lshl_b32 s21, s20, 11\ns_add_u32 s21, s21, {KXI}\ns_mov_b32 m0, s21\ns_nop 0")
        a("buffer_load_dwordx4 v15, s[8:11], s34 offen sc1 lds")
        a("s_add_u32 s21, s21, 1024\ns_mov_b32 m0, s21\nv_add_u32 v0, 64, v15")
        a("buffer_load_dwordx4 v0, s[8:11], s34 offen sc1 lds")
        a(f"s_lshl_b32 s21, s20, 10\ns_add_u32 s21, s21, {VXI}\ns_mov_b32 m0, s21\ns_nop 0")
        a("buffer_load_dwordx4 v16, s[8:11], s35 offen sc1 lds")
        a("s_add_u32 s21, s21, 4096\ns_mov_b32 m0, s21\nv_add_u32 v0, 0x40000, v16")
        a("buffer_load_dwordx4 v0, s[8:11], s35 offen sc1 lds")
    def wait_kv(seg_sreg_expr):
        pass
    lx = a.newlabel("ip")
    a("s_cmp_ge_u32 s20, 4")
    a(f"s_cbranch_scc1 {lx}")
    a(f"s_lshl_b32 s21, s2, 2\ns_add_u32 s21, s21, {hex(FKV)}")
    wait_flag(a, 21, 20)
    prefetch()
    a.label(lx)
    lstep = a.newlabel("step")
    a.label(lstep)
    stamp(a, 0, 4)
    lg = a.newlabel("g1"); lb1 = a.newlabel("b1")
    a("s_cmp_ge_u32 s20, 4")
    a(f"s_cbranch_scc1 {lg}")
    a(f"s_branch {lb1}")
    a.label(lg)
    lp = a.newlabel("p2"); ld0 = a.newlabel("p2a"); ld1 = a.newlabel("p2b"); lj = a.newlabel("p2j")
    def ld2(b):
        a(f"buffer_load_dwordx4 v[{20+b*8}:{23+b*8}], v8, s[8:11], s31 offen sc1")
        a(f"buffer_load_dwordx4 v[{24+b*8}:{27+b*8}], v8, s[8:11], s31 offen offset:1024 sc1")
    a("s_mov_b32 s36, 0")
    ld2(0)
    a.label(lp)
    ld2(1)
    a("s_waitcnt vmcnt(2)")
    chk(a, list(range(20, 28)), 36)
    a(f"s_cbranch_scc1 {ld0}")
    ld2(0)
    a("s_waitcnt vmcnt(2)")
    chk(a, list(range(28, 36)), 36)
    a(f"s_cbranch_scc1 {ld1}")
    a(f"s_add_u32 s36, s36, 1\ns_cmp_lt_u32 s36, {POLL_CAP}\ns_cbranch_scc1 {lp}\ns_branch {ld0}")
    a.label(ld1)
    a("ds_write_b128 v9, v[28:31]")
    a("ds_write_b128 v9, v[32:35] offset:1024")
    a(f"s_branch {lj}")
    a.label(ld0)
    a("ds_write_b128 v9, v[20:23]")
    a("ds_write_b128 v9, v[24:27] offset:1024")
    a.label(lj)
    a("s_waitcnt vmcnt(0)")
    a.label(lb1)
    stamp(a, 1, 4)
    a("s_waitcnt lgkmcnt(0)")
    a("s_barrier")
    stamp(a, 2, 4)
    lw2 = a.newlabel("wm2")
    a("s_cmp_lt_u32 s20, 4")
    a(f"s_cbranch_scc1 {lw2}")
    if os.environ.get("NOWARM"):
        a(f"s_branch {lw2}")
    a("v_lshlrev_b32 v0, 4, v1")
    a("v_sub_u32 v0, v11, v0")
    a("v_lshl_add_u32 v0, v1, 6, v0")
    a("buffer_load_dword v62, v0, s[8:11], s32 offen sc1")
    a("s_add_u32 s21, s31, 8192")
    a("v_lshlrev_b32 v0, 4, v1")
    a("v_sub_u32 v0, v8, v0")
    a("v_lshl_add_u32 v0, v1, 5, v0")
    a("buffer_load_dword v63, v0, s[8:11], s21 offen sc1")
    a.label(lw2)
    def memloop(body, accz):
        for i in accz:
            a(f"v_mov_b32 v{i}, 0")
        a("ds_read_b128 v[20:23], v4")
        a("ds_read_b128 v[24:27], v4 offset:512")
        a("ds_read_b128 v[28:31], v4 offset:1024")
        for kk in range(16):
            cur = 20 + (kk & 3) * 4
            nxt = 20 + ((kk + 3) & 3) * 4
            if kk < 13:
                a(f"ds_read_b128 v[{nxt}:{nxt+3}], v4 offset:{(kk+3)*512}")
                a("s_waitcnt lgkmcnt(3)")
            else:
                a(f"s_waitcnt lgkmcnt({15-kk})")
            body(kk, cur)
    def qk_body(kk, cur):
        a(f"v_mfma_f32_16x16x32_bf16 v[36:39], v[{64+kk*4}:{67+kk*4}], v[{cur}:{cur+3}], v[36:39]")
        a(f"v_mfma_f32_16x16x32_bf16 v[40:43], v[{128+kk*4}:{131+kk*4}], v[{cur}:{cur+3}], v[40:43]")
    memloop(qk_body, range(36, 44))
    a("s_nop 7\ns_nop 1")
    a("""
    v_cvt_pk_bf16_f32 v20, v36, v37
    v_cvt_pk_bf16_f32 v21, v38, v39
    v_cvt_pk_bf16_f32 v22, v40, v41
    v_cvt_pk_bf16_f32 v23, v42, v43
    """)
    a(f"ds_write_b64 v6, v[20:21] offset:{QI}")
    a(f"ds_write_b64 v6, v[22:23] offset:{KI}")
    a("buffer_store_dwordx2 v[22:23], v13, s[8:11], s33 offen sc1")
    def v_body(kk, cur):
        a(f"v_mfma_f32_16x16x32_bf16 v[44:47], v[{cur}:{cur+3}], v[{192+kk*4}:{195+kk*4}], v[44:47]")
    def v_finish(publish):
        a("s_nop 7\ns_nop 1")
        a("v_cvt_pk_bf16_f32 v18, v44, v45")
        a("v_cvt_pk_bf16_f32 v19, v46, v47")
        if publish:
            a("s_lshl_b32 s21, s20, 9")
            a("v_lshl_add_u32 v0, v1, 3, s21")
            a(f"ds_write_b64 v0, v[18:19] offset:{VI}")
        a("buffer_store_dwordx2 v[18:19], v14, s[8:11], s33 offen sc1")
    stamp(a, 3, 4)
    llast = a.newlabel("last")
    a("s_cmp_eq_u32 s30, 63")
    a(f"s_cbranch_scc1 {llast}")
    lnw2 = a.newlabel("nw2")
    a("s_cmp_ge_u32 s20, 4")
    a(f"s_cbranch_scc1 {lnw2}")
    a("s_waitcnt vmcnt(1)")
    a.label(lnw2)
    a("s_waitcnt lgkmcnt(0)")
    a("s_barrier")
    stamp(a, 4, 4)
    lnf = a.newlabel("nf")
    a("s_cmp_lg_u32 s20, 5")
    a(f"s_cbranch_scc1 {lnf}")
    a("s_cmp_eq_u32 s30, 0")
    a(f"s_cbranch_scc1 {lnf}")
    a(f"s_lshl_b32 s21, s30, 7\ns_lshl_b32 s22, s2, 2\ns_add_u32 s21, s21, s22\ns_add_u32 s21, s21, {hex(FR - 128)}")
    a("v_mov_b32 v36, s21\nv_mov_b32 v37, 1")
    a("s_mov_b64 s[54:55], exec\ns_mov_b64 exec, 1")
    a("buffer_store_dword v37, v36, s[8:11], 0 offen sc1")
    a("s_mov_b64 exec, s[54:55]")
    a.label(lnf)
    lsk3 = a.newlabel("sk3"); lp3 = a.newlabel("p3")
    a("s_cmp_lt_u32 s20, 4")
    a(f"s_cbranch_scc1 {lp3}")
    memloop(v_body, range(44, 48))
    v_finish(True)
    a("s_waitcnt lgkmcnt(0)")
    a("s_barrier")
    a(f"s_branch {lsk3}")
    a.label(lp3)
    for kk in range(4):
        a(f"ds_read_b128 v[{20+kk*4}:{23+kk*4}], v5 offset:{QI + kk*512}")
    a(f"v_lshlrev_b32 v0, 4, v1")
    seq = [(0, kk) for kk in range(4)] + [(1, kk) for kk in range(4)] + [(2, kk) for kk in range(4)]
    SA = 36
    def rd(i):
        t, kk = seq[i]
        r = 48 + (i & 3) * 4
        if t == 0:
            a(f"ds_read_b128 v[{r}:{r+3}], v5 offset:{KI + kk*512}")
        else:
            a(f"ds_read_b128 v[{r}:{r+3}], v0 offset:{KXI + ((t-1)*4+kk)*1024}")
    for i in range(3):
        rd(i)
    for i in range(12):
        a(f"v_mov_b32 v{SA+i}, 0")
    for i in range(12):
        t, kk = seq[i]
        r = 48 + (i & 3) * 4
        if i < 9:
            rd(i + 3)
            a("s_waitcnt lgkmcnt(3)")
        else:
            a(f"s_waitcnt lgkmcnt({11-i})")
        a(f"v_mfma_f32_16x16x32_bf16 v[{SA+t*4}:{SA+3+t*4}], v[{r}:{r+3}], v[{20+kk*4}:{23+kk*4}], v[{SA+t*4}:{SA+3+t*4}]")
    for i in range(4):
        a(f"ds_read_b128 v[{48+i*4}:{51+i*4}], v4 offset:{i*512}")
    for i in range(4):
        a(f"v_mov_b32 v{24+i}, 0")
    a("s_nop 4")
    sm = Asm()
    S = list(range(SA, SA + 12))
    round_scale(sm, S, 20)
    sm("v_mov_b32 v20, 0xff800000")
    for r in range(SA, SA + 4):
        sm(f"v_cndmask_b32 v{r}, v20, v{r}, s[40:41]")
    softmax_regs(sm, S, 21, 22, 23)
    lines = sm.lines
    step = max(1, len(lines) // 17)
    kk = 0
    for idx, ln in enumerate(lines):
        a.lines.append(ln)
        if kk < 16 and idx % step == step - 1:
            cur = 48 + (kk & 3) * 4
            a(f"s_waitcnt lgkmcnt({min(3, 15-kk)})")
            a(f"v_mfma_f32_16x16x32_bf16 v[24:27], v[{cur}:{cur+3}], v[{192+kk*4}:{195+kk*4}], v[24:27]")
            if kk + 4 < 16:
                a(f"ds_read_b128 v[{cur}:{cur+3}], v4 offset:{(kk+4)*512}")
            kk += 1
    assert kk == 16
    for i in range(6):
        a(f"v_cvt_pk_bf16_f32 v{28+i}, v{SA+2*i}, v{SA+1+2*i}")
    a("s_nop 3")
    a("v_cvt_pk_bf16_f32 v18, v24, v25")
    a("v_cvt_pk_bf16_f32 v19, v26, v27")
    a("buffer_store_dwordx2 v[18:19], v14, s[8:11], s33 offen sc1")
    a("s_barrier")
    a("s_lshl_b32 s21, s20, 9")
    a("v_lshl_add_u32 v0, v1, 3, s21")
    a(f"ds_read_b64 v[48:49], v0 offset:{VI + 2048}")
    a("s_lshl_b32 s21, s20, 10")
    a("v_lshlrev_b32 v0, 6, v2")
    a("v_lshl_add_u32 v0, v3, 3, v0")
    a("v_add_u32 v0, s21, v0")
    a(f"ds_read_b64 v[60:61], v0 offset:{VXI}")
    a(f"ds_read_b64 v[62:63], v0 offset:{VXI+32}")
    a(f"ds_read_b64 v[52:53], v0 offset:{VXI+4096}")
    a(f"ds_read_b64 v[54:55], v0 offset:{VXI+4096+32}")
    for i in range(8):
        a(f"v_mov_b32 v{36+i}, 0")
    a("s_waitcnt lgkmcnt(0)")
    a("v_mfma_f32_16x16x16_bf16 v[36:39], v[18:19], v[28:29], v[36:39]")
    a("v_mfma_f32_16x16x16_bf16 v[40:43], v[48:49], v[28:29], v[40:43]")
    a("s_nop 7")
    a("v_mfma_f32_16x16x32_bf16 v[36:39], v[60:63], v[30:33], v[36:39]")
    a("v_mfma_f32_16x16x32_bf16 v[40:43], v[52:55], v[30:33], v[40:43]")
    a("s_nop 7\ns_nop 1")
    a("v_cvt_pk_bf16_f32 v20, v36, v37")
    a("v_cvt_pk_bf16_f32 v21, v38, v39")
    a("v_cvt_pk_bf16_f32 v22, v40, v41")
    a("v_cvt_pk_bf16_f32 v23, v42, v43")
    a(f"ds_write_b64 v6, v[20:21] offset:{OI}")
    a(f"ds_write_b64 v6, v[22:23] offset:{OI + 1024}")
    a("s_waitcnt lgkmcnt(0)")
    a.label(lsk3)
    stamp(a, 5, 4)
    items = [(j, kk) for j in range(4) for kk in range(4)]
    RD = 5
    def rdw(i):
        j, kk = items[i]
        r = 36 + (i % RD) * 4
        a(f"ds_read_b128 v[{r}:{r+3}], v7 offset:{j*4096 + kk*1024}")
    for i in range(RD - 1):
        rdw(i)
    a("s_waitcnt vmcnt(2)")
    a("s_barrier")
    stamp(a, 6, 4)
    for kk in range(4):
        a(f"ds_read_b128 v[{20+kk*4}:{23+kk*4}], v5 offset:{OI + kk*512}")
    a("v_mov_b32 v0, v10")
    for i in range(16):
        j, kk = items[i]
        r = 36 + (i % RD) * 4
        acc = 56 if (j & 1) == 0 else 60
        if kk == 0:
            for t in range(4):
                a(f"v_mov_b32 v{acc+t}, 0")
        if i + RD - 1 < 16:
            rdw(i + RD - 1)
            a("s_waitcnt lgkmcnt(0)" if i == 0 else f"s_waitcnt lgkmcnt({RD-1})")
        else:
            a(f"s_waitcnt lgkmcnt({15-i})")
        a(f"v_mfma_f32_16x16x32_bf16 v[{acc}:{acc+3}], v[{r}:{r+3}], v[{20+kk*4}:{23+kk*4}], v[{acc}:{acc+3}]")
        if kk == 3:
            a("s_nop 7\ns_nop 1")
            for t in range(4):
                a(f"v_min_u32 v{acc+t}, -2, v{acc+t}")
            a(f"buffer_store_dwordx4 v[{acc}:{acc+3}], v0, s[8:11], s32 offen{S1}")
            a("v_add_u32 v0, 0x4000, v0")
    stamp(a, 7, 4)
    lg5 = a.newlabel("g5"); lb4 = a.newlabel("b4")
    a("s_cmp_ge_u32 s20, 4")
    a(f"s_cbranch_scc1 {lg5}")
    a("s_add_u32 s34, s34, 0x80000")
    a("s_add_u32 s35, s35, 64")
    a("s_add_u32 s21, s30, 1\ns_and_b32 s22, s21, 3\ns_cmp_lg_u32 s22, 0")
    lnk = a.newlabel("nk")
    a(f"s_cbranch_scc1 {lnk}")
    a(f"s_lshl_b32 s21, s21, 5\ns_lshl_b32 s22, s2, 2\ns_add_u32 s21, s21, s22\ns_add_u32 s21, s21, {hex(FKV)}")
    wait_flag(a, 21, 36)
    a.label(lnk)
    prefetch()
    a(f"s_branch {lb4}")
    a.label(lg5)
    lp = a.newlabel("p1"); ld0 = a.newlabel("p1a"); ld1 = a.newlabel("p1b"); lj = a.newlabel("p1j")
    def ld(b):
        for i in range(4):
            a(f"buffer_load_dwordx4 v[{20+b*16+i*4}:{23+b*16+i*4}], v11, s[8:11], s32 offen offset:{i*1024} sc1")
    a("s_mov_b32 s36, 0")
    ld(0)
    a.label(lp)
    ld(1)
    a("s_waitcnt vmcnt(4)")
    chk(a, list(range(20, 36)), 52)
    a(f"s_cbranch_scc1 {ld0}")
    ld(0)
    a("s_waitcnt vmcnt(4)")
    chk(a, list(range(36, 52)), 52)
    a(f"s_cbranch_scc1 {ld1}")
    a(f"s_add_u32 s36, s36, 1\ns_cmp_lt_u32 s36, {POLL_CAP}\ns_cbranch_scc1 {lp}\ns_branch {ld0}")
    for (lab, b) in ((ld1, 36), (ld0, 20)):
        a.label(lab)
        for i in range(4):
            a(f"v_add_f32 v{52+i}, v{b+i}, v{b+4+i}")
            a(f"v_add_f32 v{56+i}, v{b+8+i}, v{b+12+i}")
        for i in range(4):
            a(f"v_add_f32 v{52+i}, v{52+i}, v{56+i}")
        if lab == ld1:
            a(f"s_branch {lj}")
    a.label(lj)
    stamp(a, 8, 4)
    a("v_mov_b32 v60, -1\nv_mov_b32 v61, -1\nv_mov_b32 v62, -1\nv_mov_b32 v63, -1")
    for i in range(4):
        a(f"buffer_store_dwordx4 v[60:63], v11, s[8:11], s32 offen offset:{i*1024}{S1}")
    for i in range(4):
        a(f"v_mov_b32 v{56+i}, v{52+i}")
    a("s_nop 1")
    for i in range(4):
        a(f"v_permlane32_swap_b32 v{52+i}, v{56+i}")
    a("s_nop 1")
    for i in range(4):
        a(f"v_add_f32 v{52+i}, v{52+i}, v{56+i}")
    a("ds_write_b128 v12, v[52:55]")
    a("s_waitcnt lgkmcnt(0)")
    a.label(lb4)
    a("s_barrier")
    stamp(a, 9, 4)
    lnw = a.newlabel("nw")
    a("s_cmp_lg_u32 s20, 4")
    a(f"s_cbranch_scc1 {lnw}")
    a("v_lshlrev_b32 v0, 4, v1")
    for i in range(2):
        a(f"ds_read_b128 v[{52+i*4}:{55+i*4}], v0 offset:{RED + i*1024}")
    a("s_waitcnt lgkmcnt(0)")
    for i in range(4):
        a(f"v_add_f32 v{52+i}, v{52+i}, v{56+i}")
    for i in range(4):
        a(f"v_mov_b32 v{56+i}, v{52+i}")
    a("s_nop 1")
    for i in range(4):
        a(f"v_permlane32_swap_b32 v{52+i}, v{56+i}")
    a("s_nop 1")
    for i in range(4):
        a(f"v_add_f32 v{52+i}, v{52+i}, v{56+i}")
    a("v_cvt_pk_bf16_f32 v56, v52, v53")
    a("v_cvt_pk_bf16_f32 v57, v54, v55")
    a("v_min_u32 v56, -2, v56")
    a("v_min_u32 v57, -2, v57")
    a(f"buffer_store_dwordx2 v[56:57], v17, s[8:11], s31 offen{S1}")
    stamp(a, 10, 4)
    a.label(lnw)
    a(f"""
    s_add_u32 s30, s30, 1
    s_add_u32 s31, s31, 8192
    s_add_u32 s32, s32, 0x80000
    s_and_b32 s32, s32, 0x1fffff
    s_add_u32 s33, s33, 0x10000
    s_branch {lstep}
    """)
    a.label(llast)
    memloop(v_body, range(44, 48))
    v_finish(False)
    a("s_waitcnt vmcnt(0)")
    a("s_barrier")
    a("s_cmp_lg_u32 s20, 5")
    a(f"s_cbranch_scc1 {lend}")
    a(f"s_lshl_b32 s22, s2, 2\ns_add_u32 s21, s22, {hex(FR + 63*128)}")
    a("v_mov_b32 v36, s21\nv_mov_b32 v37, 1")
    a("s_mov_b64 exec, 1")
    a("buffer_store_dword v37, v36, s[8:11], 0 offen sc1")
    a("v_subrev_u32 v36, 128, v36")
    a("buffer_store_dword v37, v36, s[8:11], 0 offen sc1")
    a(f"s_branch {lend}")

def gen_rec_role(a, lend):
    a("""
    v_and_b32 v2, 15, v1          ; m
    v_lshrrev_b32 v3, 4, v1       ; g
    v_and_b32 v18, 7, v1          ; m&7
    """)
    a(f"""
    s_getreg_b32 s21, hwreg(HW_REG_XCC_ID)
    s_add_u32 s21, s21, 1
    s_lshl_b32 s22, s2, 2
    s_add_u32 s22, s22, {hex(XT)}
    v_mov_b32 v20, s22
    v_mov_b32 v21, s21
    s_mov_b64 exec, 1
    buffer_store_dword v21, v20, s[8:11], 0 offen sc1
    s_mov_b64 exec, -1
    """)
    a("s_lshl_b32 s21, s2, 3\ns_add_u32 s21, s21, s20\ns_lshl_b32 s21, s21, 14")
    a("v_lshl_add_u32 v19, v1, 4, s21")
    for j in range(3):
        a(f"v_add_u32 v20, {hex(WQKV + j*4*MB)}, v19")
        for kk in range(16):
            if kk % 4 == 0 and kk:
                a("v_add_u32 v20, 0x1000, v20")
            r = 64 + j*64 + kk*4
            a(f"buffer_load_dwordx4 v[{r}:{r+3}], v20, s[8:11], 0 offen offset:{(kk%4)*1024}")
    a("s_lshl_b32 s21, s20, 19")
    a("s_lshl_b32 s22, s2, 12")
    a("s_add_u32 s21, s21, s22")
    a(f"s_add_u32 s21, s21, {hex(WO)}")
    a("v_lshl_add_u32 v20, v1, 4, s21")
    a("s_lshl_b32 s22, s20, 14")
    a(f"s_add_u32 s22, s22, {WOI}")
    a("v_lshl_add_u32 v21, v1, 4, s22")
    for j in range(4):
        for kk in range(4):
            a(f"buffer_load_dwordx4 v[{24+kk*4}:{27+kk*4}], v20, s[8:11], 0 offen offset:{kk*1024}")
        a("s_waitcnt vmcnt(0)")
        for kk in range(4):
            a(f"ds_write_b128 v21, v[{24+kk*4}:{27+kk*4}] offset:{j*4096 + kk*1024}")
        if j < 3:
            a(f"v_add_u32 v20, {hex(128*1024)}, v20")
        a("s_waitcnt lgkmcnt(0)")
    a(f"""
    v_lshlrev_b32 v5, 3, v3
    v_add_lshl_u32 v5, v5, v18, 4        ; (g*8+(m&7))*16
    v_add_u32 v4, {MEMI}, v5
    s_and_b32 s21, s20, 1
    s_lshl_b32 s21, s21, 1
    v_lshrrev_b32 v6, 1, v3
    v_add_u32 v6, s21, v6
    v_lshlrev_b32 v6, 7, v6
    v_lshl_add_u32 v6, v18, 4, v6
    v_and_b32 v19, 1, v3
    v_lshl_add_u32 v6, v19, 3, v6
    s_lshr_b32 s21, s20, 1
    s_lshl_b32 s21, s21, 9
    v_add_u32 v6, s21, v6
    s_lshl_b32 s21, s20, 14
    s_add_u32 s21, s21, {WOI}
    v_lshl_add_u32 v7, v1, 4, s21
    s_and_b32 s23, s20, 3
    s_lshl_b32 s21, s23, 11
    v_lshl_add_u32 v9, v1, 4, s21
    v_add_u32 v8, {hex(M2)}, v9
    v_add_u32 v9, {MEMI}, v9
    s_lshl_b32 s21, s20, 16               ; (4w)*16384
    s_lshl_b32 s22, s2, 9
    s_add_u32 s21, s21, s22
    s_add_u32 s21, s21, {hex(H1)}
    v_add_u32 v10, s21, v5
    s_lshl_b32 s21, s2, 14
    s_lshl_b32 s22, s23, 12
    s_add_u32 s21, s21, s22
    s_add_u32 s21, s21, {hex(H1)}
    v_lshl_add_u32 v11, v1, 4, s21
    v_and_b32 v19, 31, v1
    s_lshl_b32 s21, s23, 9
    s_add_u32 s21, s21, {RED}
    v_lshl_add_u32 v12, v19, 4, s21
    s_lshl_b32 s21, s2, 8
    s_lshl_b32 s22, s20, 5
    s_add_u32 s21, s21, s22               ; (h*128+16w)*2
    v_lshlrev_b32 v13, 13, v18
    v_lshl_add_u32 v13, v3, 3, v13
    v_add_u32 v13, s21, v13
    v_add_u32 v13, {hex(KM)}, v13
    s_lshl_b32 s22, s21, 3                ; (h*128+16w)*16
    v_lshl_add_u32 v14, v2, 4, s22
    v_and_b32 v19, 1, v3
    v_lshl_add_u32 v14, v19, 3, v14
    v_add_u32 v14, {hex(VMT)}, v14
    s_lshr_b32 s21, s20, 1
    s_lshl_b32 s21, s21, 4
    v_add_u32 v15, s21, v2
    v_lshlrev_b32 v15, 14, v15
    s_lshl_b32 s21, s2, 8
    s_and_b32 s22, s20, 1
    s_lshl_b32 s22, s22, 7
    s_add_u32 s21, s21, s22
    s_add_u32 s21, s21, {hex(QK + 8192)}
    v_lshl_add_u32 v15, v3, 4, v15
    v_add_u32 v15, s21, v15
    s_lshl_b32 s21, s2, 7
    s_lshl_b32 s22, s20, 4
    s_add_u32 s21, s21, s22
    v_lshrrev_b32 v16, 2, v1
    v_add_u32 v16, s21, v16
    v_lshlrev_b32 v16, 12, v16
    v_and_b32 v19, 3, v1
    v_lshl_add_u32 v16, v19, 4, v16
    v_add_u32 v16, {hex(VT)}, v16
    v_lshrrev_b32 v19, 4, v1
    v_and_b32 v19, 1, v19
    v_lshl_add_u32 v17, v19, 3, v18
    v_lshlrev_b32 v17, 4, v17
    v_lshrrev_b32 v19, 3, v1
    v_and_b32 v19, 1, v19
    v_lshl_add_u32 v17, v19, 3, v17
    s_lshl_b32 s21, s2, 8
    s_add_u32 s21, s21, {hex(M2 + 8192)}
    v_add_u32 v17, s21, v17
    v_cmp_gt_u32 s[40:41], 2, v3
    s_mov_b32 s30, 0
    s_mov_b32 s31, 0
    s_mov_b32 s32, 0
    s_mov_b32 s33, 0
    s_mov_b32 s34, 0
    s_mov_b32 s35, 0
    """)
    lp = a.newlabel("xc")
    a(f"""
    v_and_b32 v20, 31, v1
    v_lshlrev_b32 v20, 2, v20
    v_add_u32 v20, {hex(XT)}, v20
    s_mov_b32 s36, 0
    """)
    a.label(lp)
    a(f"""
    buffer_load_dword v21, v20, s[8:11], 0 offen sc1
    s_add_u32 s36, s36, 1
    s_waitcnt vmcnt(0)
    v_cmp_eq_u32 vcc, 0, v21
    s_cmp_lt_u32 s36, {POLL_CAP}
    s_cselect_b64 s[44:45], vcc, 0
    s_cmp_lg_u64 s[44:45], 0
    s_cbranch_scc1 {lp}
    v_readfirstlane_b32 s21, v21
    s_nop 3
    v_cmp_ne_u32 vcc, s21, v21
    s_cmp_lg_u64 vcc, 0
    """)
    lslow = a.newlabel("slow")
    if os.environ.get("FORCESLOW"):
        a(f"s_branch {lslow}")
    a(f"s_cbranch_scc1 {lslow}")
    rec_loop(a, True, lend)
    a.label(lslow)
    rec_loop(a, False, lend)

def worker_gemm(a, s_nt0, s_m0, flag_s):
    a("s_barrier")
    a(f"""
    s_lshl_b32 s21, s20, 4
    s_add_u32 s22, s21, s{s_m0}
    s_lshl_b32 s22, s22, 10
    s_add_u32 s22, s22, {hex(XN)}
    v_lshl_add_u32 v4, v1, 4, s22
    s_mul_i32 s21, s21, 1040
    v_lshl_add_u32 v5, v1, 4, s21
    """)
    for half in range(2):
        for i in range(8):
            r = 16 + i*4
            if (half*8+i) % 4 == 0 and (half*8+i):
                a("v_add_u32 v4, 0x1000, v4")
            a(f"buffer_load_dwordx4 v[{r}:{r+3}], v4, s[8:11], 0 offen offset:{((half*8+i)%4)*1024}")
        for i in range(8):
            r = 16 + i*4
            a(f"s_waitcnt vmcnt({7-i})")
            a(f"ds_write_b128 v5, v[{r}:{r+3}] offset:{(half*8+i)*1040}")
    a("s_waitcnt lgkmcnt(0)")
    a("s_barrier")
    a(f"""
    s_lshl_b32 s25, s24, 1
    s_add_u32 s22, s{s_nt0}, s25
    s_mov_b32 s23, 1040
    v_mul_lo_u32 v4, v2, s23
    v_lshl_add_u32 v4, v3, 4, v4
    """)
    vX = [200+i for i in range(8)]
    for mt in range(8):
        a(f"v_add_u32 v{vX[mt]}, {mt*16*1040}, v4")
    a("s_lshl_b32 s25, s22, 14")
    a(f"s_add_u32 s25, s25, {hex(WQKV)}")
    a("v_lshl_add_u32 v4, v1, 4, s25")
    for nt in range(2):
        a(f"v_add_u32 v{12+nt}, {nt*16*1024}, v4")
    a("s_mov_b32 s26, 0\ns_mov_b32 s27, 0")
    XF, WF, ACC = 16, 80, 96
    lv = a.newlabel("wv"); ldn = a.newlabel("wdn")
    a("s_cmp_ge_u32 s22, 512")
    a(f"s_cbranch_scc1 {lv}")
    gemm_loop(a, 8, 2, 16, 8, True, vX, [12,13], XF, WF, ACC, 26, 27, 28, xlds=True)
    a(f"""
    v_add_u32 v4, s{s_m0}, v2
    v_lshlrev_b32 v4, 14, v4
    s_lshl_b32 s25, s22, 5
    v_lshl_add_u32 v4, v3, 3, v4
    v_add_u32 v4, s25, v4
    v_add_u32 v4, {hex(QK)}, v4
    """)
    for mt in range(8):
        for nt in range(2):
            c = ACC + (nt * 8 + mt) * 4
            a(f"v_cvt_pk_bf16_f32 v{16+nt*2}, v{c}, v{c+1}")
            a(f"v_cvt_pk_bf16_f32 v{17+nt*2}, v{c+2}, v{c+3}")
            a(f"buffer_store_dwordx2 v[{16+nt*2}:{17+nt*2}], v4, s[8:11], 0 offen offset:{nt*32} sc1")
            a("s_nop 1")
        if mt < 7:
            a(f"v_add_u32 v4, {hex(16*16384)}, v4")
    a(f"s_branch {ldn}")
    a.label(lv)
    gemm_loop(a, 8, 2, 16, 8, False, vX, [12,13], XF, WF, ACC, 26, 27, 28, xlds=True)
    a(f"""
    s_sub_u32 s25, s22, 512
    s_lshl_b32 s25, s25, 4
    v_add_u32 v4, s25, v2
    v_lshlrev_b32 v4, 12, v4
    s_lshl_b32 s25, s{s_m0}, 1
    v_lshl_add_u32 v4, v3, 3, v4
    v_add_u32 v4, s25, v4
    v_add_u32 v4, {hex(VT)}, v4
    """)
    for nt in range(2):
        for mt in range(8):
            c = ACC + (nt * 8 + mt) * 4
            a(f"v_cvt_pk_bf16_f32 v{16+(mt&1)*2}, v{c}, v{c+1}")
            a(f"v_cvt_pk_bf16_f32 v{17+(mt&1)*2}, v{c+2}, v{c+3}")
            a(f"buffer_store_dwordx2 v[{16+(mt&1)*2}:{17+(mt&1)*2}], v4, s[8:11], 0 offen offset:{mt*32} sc1")
            a("s_nop 1")
        if nt < 1:
            a(f"v_add_u32 v4, {hex(16*4096)}, v4")
    a.label(ldn)

def worker_attn(a):
    a(f"""
    v_and_b32 v4, 7, v1
    s_lshl_b32 s24, s23, 19
    s_lshl_b32 s25, s22, 8
    s_add_u32 s24, s24, s25
    s_add_u32 s24, s24, {hex(QK)}
    v_lshlrev_b32 v5, 14, v2
    v_lshl_add_u32 v5, v3, 4, v5
    v_add_u32 v5, s24, v5
    v_add_u32 v6, {hex(16*16384)}, v5
    s_lshl_b32 s24, s23, 16
    s_add_u32 s24, s24, s25
    s_add_u32 s24, s24, {hex(KM)}
    v_lshlrev_b32 v7, 13, v4
    v_lshl_add_u32 v7, v3, 4, v7
    v_add_u32 v7, s24, v7
    """)
    for tt in range(2):
        for kk in range(4):
            r = 16 + (tt*4+kk)*4
            a(f"buffer_load_dwordx4 v[{r}:{r+3}], v{5+tt}, s[8:11], 0 offen offset:{kk*64} sc1")
    for kk in range(4):
        r = 48 + kk*4
        a(f"buffer_load_dwordx4 v[{r}:{r+3}], v7, s[8:11], 0 offen offset:{kk*64} sc1")
    a("v_add_u32 v8, 0x2000, v5\nv_add_u32 v9, 0x2000, v6")
    for t in range(1, 3):
        for kk in range(4):
            r = 48 + (t*4+kk)*4
            a(f"buffer_load_dwordx4 v[{r}:{r+3}], v{7+t}, s[8:11], 0 offen offset:{kk*64} sc1")
    ACC = 96
    for i in range(24):
        a(f"v_mov_b32 v{ACC+i}, 0")
    a("s_waitcnt vmcnt(0)")
    for t in range(3):
        for tt in range(2):
            for kk in range(4):
                c = ACC + (t*2+tt)*4
                a(f"v_mfma_f32_16x16x32_bf16 v[{c}:{c+3}], v[{48+(t*4+kk)*4}:{51+(t*4+kk)*4}], v[{16+(tt*4+kk)*4}:{19+(tt*4+kk)*4}], v[{c}:{c+3}]")
    a("s_nop 7\ns_nop 1")
    a(f"""
    s_lshl_b32 s24, s23, 16
    s_lshl_b32 s25, s22, 11
    s_add_u32 s24, s24, s25
    s_add_u32 s24, s24, {hex(VMT)}
    v_and_b32 v10, 1, v3
    v_lshlrev_b32 v10, 3, v10
    v_lshl_add_u32 v10, v2, 4, v10
    v_add_u32 v10, s24, v10
    s_lshl_b32 s24, s22, 19
    s_lshl_b32 s25, s23, 6
    s_add_u32 s24, s24, s25
    s_add_u32 s24, s24, {hex(VT)}
    v_lshlrev_b32 v11, 12, v2
    v_lshl_add_u32 v11, v3, 3, v11
    v_add_u32 v11, s24, v11
    """)
    for et in range(8):
        r = 16 + et*6
        a(f"buffer_load_dwordx2 v[{r}:{r+1}], v10, s[8:11], 0 offen offset:{et*256} sc1")
        a(f"buffer_load_dwordx2 v[{r+2}:{r+3}], v11, s[8:11], 0 offen sc1")
        a(f"buffer_load_dwordx2 v[{r+4}:{r+5}], v11, s[8:11], 0 offen offset:32 sc1")
        if et < 7:
            a("v_add_u32 v11, 0x10000, v11")
    a("v_lshlrev_b32 v12, 2, v3")
    a("v_sub_u32 v12, v2, v12")
    a("v_cmp_gt_u32 s[40:41], 2, v3")
    a("v_mov_b32 v13, 0xff800000")
    P = 64
    for tt in range(2):
        S = [ACC + (t*2+tt)*4 + r for t in range(3) for r in range(4)]
        round_scale(a, S, 14)
        for r in range(4):
            a(f"v_cndmask_b32 v{S[r]}, v13, v{S[r]}, s[40:41]")
        for t in range(1, 3):
            for r in range(4):
                cst = (t-1)*16 + r - tt*16
                a(f"v_cmp_le_i32 vcc, {cst}, v12")
                a("s_nop 1")
                a(f"v_cndmask_b32 v{S[t*4+r]}, v13, v{S[t*4+r]}, vcc")
        softmax_regs(a, S, 14, 15, 90)
        for i in range(6):
            a(f"v_cvt_pk_bf16_f32 v{P+tt*6+i}, v{S[2*i]}, v{S[2*i+1]}")
    a(f"""
    s_lshl_b32 s24, s23, 18
    s_lshl_b32 s25, s22, 8
    s_add_u32 s24, s24, s25
    s_add_u32 s24, s24, {hex(OB)}
    v_lshlrev_b32 v12, 13, v2
    v_lshl_add_u32 v12, v3, 3, v12
    v_add_u32 v12, s24, v12
    v_add_u32 v13, {hex(16*8192)}, v12
    s_waitcnt vmcnt(0)
    """)
    OA = 80
    for et in range(8):
        r = 16 + et*6
        for tt in range(2):
            c = OA + tt*4
            for i in range(4):
                a(f"v_mov_b32 v{c+i}, 0")
            a("s_nop 1")
            a(f"v_mfma_f32_16x16x16_bf16 v[{c}:{c+3}], v[{r}:{r+1}], v[{P+tt*6}:{P+tt*6+1}], v[{c}:{c+3}]")
            a("s_nop 7")
            a(f"v_mfma_f32_16x16x32_bf16 v[{c}:{c+3}], v[{r+2}:{r+5}], v[{P+tt*6+2}:{P+tt*6+5}], v[{c}:{c+3}]")
        a("s_nop 7\ns_nop 1")
        for tt in range(2):
            c = OA + tt*4
            a(f"v_cvt_pk_bf16_f32 v{88+tt*2}, v{c}, v{c+1}")
            a(f"v_cvt_pk_bf16_f32 v{89+tt*2}, v{c+2}, v{c+3}")
            a(f"buffer_store_dwordx2 v[{88+tt*2}:{89+tt*2}], v{12+tt}, s[8:11], 0 offen offset:{et*32} sc1")
        a("s_nop 1")

NW = 224
def gen_worker_role(a, lend):
    a("""
    v_and_b32 v2, 15, v1
    v_lshrrev_b32 v3, 4, v1
    s_and_b32 s24, s20, 3
    s_lshr_b32 s42, s20, 2         ; half
    s_mov_b32 s43, s29
    """)
    lt = a.newlabel("gt"); lq = a.newlabel("gq"); lgo = a.newlabel("ggo"); ldone = a.newlabel("gdone")
    a.label(lt)
    a("s_cmp_ge_u32 s43, 768")
    a(f"s_cbranch_scc1 {ldone}")
    a("s_cmp_ge_u32 s43, 512")
    a(f"s_cbranch_scc1 {lq}")
    a(f"""
    s_lshr_b32 s44, s43, 5         ; mb
    s_and_b32 s45, s43, 31         ; h
    s_lshl_b32 s46, s45, 3         ; h*8 tiles
    s_lshl_b32 s47, s42, 8         ; half*256 : k -> 256.., v -> 512..
    s_add_u32 s46, s46, s47
    s_add_u32 s46, s46, 256        ; nt0
    s_lshl_b32 s47, s44, 7         ; m0
    s_lshl_b32 s48, s43, 2
    s_add_u32 s48, s48, {hex(FKV)}
    s_branch {lgo}
    """)
    a.label(lq)
    a(f"""
    s_sub_u32 s45, s43, 512
    s_lshr_b32 s44, s45, 4         ; mb
    s_and_b32 s45, s45, 15
    s_lshl_b32 s45, s45, 1
    s_add_u32 s45, s45, s42        ; h
    s_lshl_b32 s46, s45, 3         ; nt0
    s_lshl_b32 s47, s44, 7
    s_lshl_b32 s48, s44, 5
    s_add_u32 s48, s48, s45
    s_lshl_b32 s48, s48, 2
    s_add_u32 s48, s48, {hex(FQ)}
    """)
    a.label(lgo)
    worker_gemm(a, 46, 47, 48)
    a("s_waitcnt vmcnt(0)")
    a("s_barrier")
    lnf = a.newlabel("gnf")
    a("s_cmp_lg_u32 s24, 0")
    a(f"s_cbranch_scc1 {lnf}")
    a("s_cmp_ge_u32 s43, 512")
    lyes = a.newlabel("gy")
    a(f"s_cbranch_scc1 {lyes}")
    a("s_cmp_lg_u32 s42, 0")
    a(f"s_cbranch_scc1 {lnf}")
    a.label(lyes)
    a("v_mov_b32 v4, s48\nv_mov_b32 v5, 1")
    a("s_mov_b64 exec, 1")
    a("buffer_store_dword v5, v4, s[8:11], 0 offen sc1")
    a("s_mov_b64 exec, -1")
    a.label(lnf)
    a(f"s_add_u32 s43, s43, {NW}")
    a(f"s_branch {lt}")
    a.label(ldone)
    la = a.newlabel("pt"); lA = a.newlabel("pA"); lW = a.newlabel("pW"); lF1 = a.newlabel("pF1"); lF2 = a.newlabel("pF2"); lnext = a.newlabel("pn")
    lsa = [a.newlabel("sa") for _ in range(4)]

    a(f"""
    s_mov_b32 s49, 0
    s_mov_b32 s43, s29
    s_mov_b32 s42, 40
    s_mov_b32 s39, 256
    s_cmp_lt_u32 s29, 40
    s_cbranch_scc1 {la}
    s_mov_b32 s49, 1
    s_sub_u32 s43, s29, 40
    s_mov_b32 s42, 104
    s_mov_b32 s39, 1024
    s_cmp_lt_u32 s29, 144
    s_cbranch_scc1 {la}
    s_mov_b32 s49, 2
    s_sub_u32 s43, s29, 144
    s_mov_b32 s42, 40
    s_mov_b32 s39, 896
    s_cmp_lt_u32 s29, 184
    s_cbranch_scc1 {la}
    s_mov_b32 s49, 3
    s_sub_u32 s43, s29, 184
    s_mov_b32 s42, 40
    s_mov_b32 s39, 1024
    """)
    a.label(la)
    a("s_cmp_ge_u32 s43, s39")
    a(f"s_cbranch_scc1 {lend}")
    a(f"""
    s_lshr_b32 s44, s43, 2
    s_and_b32 s45, s43, 3
    s_cmp_eq_u32 s49, 0
    s_cbranch_scc1 {lA}
    s_lshr_b32 s44, s43, 4
    s_and_b32 s45, s43, 15
    s_cmp_eq_u32 s49, 1
    s_cbranch_scc1 {lW}
    s_cmp_eq_u32 s49, 3
    s_cbranch_scc1 {lF2}
    s_mul_i32 s44, s43, 4682
    s_lshr_b32 s44, s44, 16
    s_mul_i32 s45, s44, 14
    s_sub_u32 s45, s43, s45
    s_branch {lF1}
    """)
    def set_flag(sreg):
        l = a.newlabel("sf")
        a("s_waitcnt vmcnt(0)")
        a("s_barrier")
        a("s_cmp_lg_u32 s20, 0")
        a(f"s_cbranch_scc1 {l}")
        a(f"v_mov_b32 v4, s{sreg}\nv_mov_b32 v5, 1")
        a("s_mov_b64 exec, 1")
        a("buffer_store_dword v5, v4, s[8:11], 0 offen sc1")
        a("s_mov_b64 exec, -1")
        a.label(l)
    a.label(lA)
    a(f"""
    s_mov_b32 s23, s44               ; s
    s_lshl_b32 s46, s23, 2
    s_add_u32 s46, s46, s45
    s_lshl_b32 s46, s46, 2
    s_add_u32 s46, s46, {hex(FA)}
    s_lshl_b32 s22, s45, 3
    s_add_u32 s22, s22, s20          ; h
    s_lshl_b32 s21, s23, 5
    s_add_u32 s21, s21, s22
    s_lshl_b32 s21, s21, 2
    s_add_u32 s21, s21, {hex(FR)}
    """)
    wait_flag(a, 21, 16)
    a(f"""
    s_lshr_b32 s21, s23, 2
    s_lshl_b32 s21, s21, 5
    s_add_u32 s21, s21, s22
    s_lshl_b32 s21, s21, 2
    s_add_u32 s47, s21, {hex(FQ)}
    s_add_u32 s21, s21, {hex(FKV)}
    """)
    wait_flag(a, 21, 16)
    wait_flag(a, 47, 16)
    worker_attn(a)
    set_flag(46)
    a(f"s_branch {lnext}")

    def splitk_stage(A_off, lda, W_off, kk_per_wave, nwaves, w_nt_stride, w_kk_stride, is_w):
        a(f"""
        s_lshl_b32 s21, s44, 5            ; m0
        s_lshl_b32 s22, s45, 1            ; nt0
        v_add_u32 v4, s21, v2
        s_mov_b32 s23, {lda}
        v_mul_lo_u32 v4, v4, s23
        v_lshl_add_u32 v4, v3, 4, v4
        v_add_u32 v4, {hex(A_off)}, v4
        """)
        for mt in range(2):
            a(f"v_add_u32 v{8+mt}, {mt*16*lda}, v4")
        a(f"s_mul_i32 s25, s22, {w_nt_stride}")
        a(f"s_add_u32 s25, s25, {hex(W_off)}")
        a("v_lshl_add_u32 v4, v1, 4, s25")
        for nt in range(2):
            a(f"v_add_u32 v{12+nt}, {nt*w_nt_stride}, v4")
        a(f"s_mul_i32 s26, s20, {kk_per_wave*64}")
        a(f"s_mul_i32 s27, s20, {kk_per_wave*w_kk_stride}")
        XF, WF, ACC = 16, 48, 80
        lz = a.newlabel("skz"); lr = a.newlabel("skr")
        if nwaves < 8:
            a(f"s_cmp_ge_u32 s20, {nwaves}")
            a(f"s_cbranch_scc1 {lz}")
        gemm_loop(a, 2, 2, kk_per_wave, 8, True, [8,9], [12,13], XF, WF, ACC, 26, 27, 28, wstride=w_kk_stride, xsc1=True, D=4)
        if nwaves < 8:
            a(f"s_branch {lr}")
            a.label(lz)
            for i in range(16):
                a(f"v_mov_b32 v{ACC+i}, 0")
            a.label(lr)
        a("s_lshl_b32 s25, s20, 12")
        a("v_lshl_add_u32 v4, v1, 4, s25")
        for q in range(4):
            a(f"ds_write_b128 v4, v[{ACC+q*4}:{ACC+q*4+3}] offset:{q*1024}")
        a("s_waitcnt lgkmcnt(0)")
        a("s_barrier")
        lsk = a.newlabel("sks")
        a("s_cmp_ge_u32 s20, 4")
        a(f"s_cbranch_scc1 {lsk}")
        a("s_lshl_b32 s25, s20, 10")
        a("v_lshl_add_u32 v4, v1, 4, s25")
        for v in range(8):
            r = 16 + v*4
            a(f"ds_read_b128 v[{r}:{r+3}], v4 offset:{v*4096}")
        a(f"""
        s_and_b32 s25, s20, 1
        s_lshl_b32 s25, s25, 4
        s_add_u32 s25, s25, s21
        v_add_u32 v5, s25, v2
        v_lshlrev_b32 v5, 10, v5
        s_lshr_b32 s25, s20, 1
        s_add_u32 s25, s25, s22
        s_lshl_b32 s25, s25, 5
        v_lshl_add_u32 v5, v3, 3, v5
        v_add_u32 v5, s25, v5
        v_add_u32 v6, {hex(HB)}, v5
        """)
        if is_w:
            a("buffer_load_dwordx2 v[96:97], v5, s[12:15], 0 offen")
        else:
            a("buffer_load_dwordx2 v[96:97], v6, s[8:11], 0 offen sc1")
        a("s_waitcnt vmcnt(0) lgkmcnt(0)")
        for c in range(4):
            for v in range(1, 8):
                a(f"v_add_f32 v{16+c}, v{16+c}, v{16+c+v*4}")
        a("v_cvt_pk_bf16_f32 v90, v16, v17")
        a("v_cvt_pk_bf16_f32 v91, v18, v19")
        for j in range(2):
            a(f"v_lshlrev_b32 v92, 16, v{90+j}")
            a(f"v_and_b32 v93, 0xffff0000, v{90+j}")
            a(f"v_lshlrev_b32 v94, 16, v{96+j}")
            a(f"v_and_b32 v95, 0xffff0000, v{96+j}")
            a("v_add_f32 v92, v92, v94")
            a("v_add_f32 v93, v93, v95")
            a(f"v_cvt_pk_bf16_f32 v{100+j}, v92, v93")
        if is_w:
            a("buffer_store_dwordx2 v[100:101], v6, s[8:11], 0 offen sc1")
        else:
            a("buffer_store_dwordx2 v[100:101], v5, s[16:19], 0 offen")
        a.label(lsk)
    a.label(lW)
    a(f"""
    s_and_b32 s22, s20, 3
    s_lshl_b32 s21, s44, 2
    s_add_u32 s21, s21, s22
    s_lshl_b32 s21, s21, 2
    s_add_u32 s21, s21, {hex(FA)}
    """)
    wait_flag(a, 21, 16)
    a("s_barrier")
    splitk_stage(OB, 8192, WO, 16, 8, 128*1024, 1024, True)
    a(f"s_lshl_b32 s46, s44, 4\ns_add_u32 s46, s46, s45\ns_lshl_b32 s46, s46, 2\ns_add_u32 s46, s46, {hex(FH)}")
    set_flag(46)
    a(f"s_branch {lnext}")
    a.label(lF1)
    a(f"""
    s_lshl_b32 s21, s44, 4
    s_add_u32 s21, s21, s20
    s_lshl_b32 s21, s21, 2
    s_add_u32 s21, s21, {hex(FH)}
    """)
    wait_flag(a, 21, 16)
    a("s_add_u32 s21, s21, 32")
    wait_flag(a, 21, 16)
    a("s_barrier")
    for i in range(4):
        a(f"s_lshl_b32 s21, s44, 5\ns_lshl_b32 s22, s20, 2\ns_add_u32 s21, s21, s22\ns_add_u32 s21, s21, {i}")
        a("v_mov_b32 v4, s21")
        a(f"s_lshl_b32 s22, s20, 2\ns_add_u32 s22, s22, {i}\ns_mul_i32 s22, s22, 1040")
        a("v_lshl_add_u32 v40, v1, 4, s22")
        emit_ln_row(a, 8, HB, 8, 0, 4, sc1=True, lds_addr=40)
    a("v_and_b32 v2, 15, v1\nv_lshrrev_b32 v3, 4, v1")
    a("s_waitcnt lgkmcnt(0)")
    a("s_barrier")
    a(f"""
    s_lshl_b32 s22, s45, 3
    s_add_u32 s22, s22, s20
    s_mov_b32 s23, 1040
    v_mul_lo_u32 v4, v2, s23
    v_lshl_add_u32 v4, v3, 4, v4
    """)
    for mt in range(2):
        a(f"v_add_u32 v{8+mt}, {mt*16*1040}, v4")
    a("s_lshl_b32 s25, s22, 14")
    a("v_lshl_add_u32 v4, v1, 4, s25")
    a(f"v_add_u32 v12, {hex(WG)}, v4")
    a(f"v_add_u32 v13, {hex(WU)}, v4")
    a("s_mov_b32 s26, 0\ns_mov_b32 s27, 0")
    XF, WF, ACC = 16, 48, 80
    gemm_loop(a, 2, 2, 16, 8, True, [8,9], [12,13], XF, WF, ACC, 26, 27, 28, xlds=True, D=4)
    a(f"""
    s_lshl_b32 s21, s44, 5
    v_add_u32 v4, s21, v2
    s_mov_b32 s25, 3584
    v_mul_lo_u32 v4, v4, s25
    s_lshl_b32 s25, s22, 5
    v_lshl_add_u32 v4, v3, 3, v4
    v_add_u32 v4, s25, v4
    v_add_u32 v4, {hex(HH)}, v4
    """)
    for mt in range(2):
        cg = ACC + mt*4
        cu = ACC + (2+mt)*4
        o = 16 + mt*2
        for j in range(2):
            a(f"v_cvt_pk_bf16_f32 v20, v{cg+2*j}, v{cg+2*j+1}")
            a(f"v_cvt_pk_bf16_f32 v21, v{cu+2*j}, v{cu+2*j+1}")
            a("v_lshlrev_b32 v22, 16, v20")
            a("v_and_b32 v23, 0xffff0000, v20")
            a("v_lshlrev_b32 v24, 16, v21")
            a("v_and_b32 v25, 0xffff0000, v21")
            a("v_mul_f32 v22, v22, v24")
            a("v_mul_f32 v23, v23, v25")
            a(f"v_cvt_pk_bf16_f32 v{o+j}, v22, v23")
        a(f"buffer_store_dwordx2 v[{o}:{o+1}], v4, s[8:11], 0 offen sc1")
        if mt < 1:
            a(f"v_add_u32 v4, {16*3584}, v4")
    a(f"s_lshl_b32 s46, s44, 4\ns_add_u32 s46, s46, s45\ns_lshl_b32 s46, s46, 2\ns_add_u32 s46, s46, {hex(FF)}")
    set_flag(46)
    a(f"s_branch {lnext}")
    a.label(lF2)
    a(f"""
    s_lshl_b32 s21, s44, 4
    s_add_u32 s22, s21, s20
    s_lshl_b32 s22, s22, 2
    s_add_u32 s22, s22, {hex(FF)}
    """)
    wait_flag(a, 22, 16)
    a(f"""
    s_add_u32 s22, s22, 32
    s_add_u32 s21, s21, s45
    s_lshl_b32 s21, s21, 2
    s_add_u32 s21, s21, {hex(FH)}
    s_cmp_lt_u32 s20, 6
    s_cselect_b32 s21, s22, s21
    """)
    wait_flag(a, 21, 16)
    a("s_barrier")
    splitk_stage(HH, 3584, WD, 8, 7, 1024, 32*1024, False)
    a("s_barrier")
    a.label(lnext)
    a("s_add_u32 s43, s43, s42")
    a(f"s_branch {la}")

def gen_mega(a):
    name = "mega_kernel"
    kernel_header(a, name)
    lend = a.newlabel("mend")
    lwk = a.newlabel("mwk")
    lexit = a.newlabel("mexit")
    a(f"""
    s_cmp_ge_u32 s2, 256
    s_cbranch_scc1 {lexit}
    s_load_dwordx2 s[4:5], s[0:1], {KA_WS}
    s_load_dwordx2 s[6:7], s[0:1], {KA_X}
    s_load_dwordx2 s[22:23], s[0:1], {KA_OUT}
    v_and_b32 v1, 63, v0
    v_lshrrev_b32 v2, 6, v0
    s_nop 0
    v_readfirstlane_b32 s20, v2
    s_waitcnt lgkmcnt(0)
    """)
    srd(a, 8, 4, WS_BYTES)
    srd(a, 12, 6, 2 * MB)
    srd(a, 16, 22, 2 * MB)
    if STAMP:
        a("s_mov_b32 s99, s2\ns_memrealtime s[50:51]\ns_waitcnt lgkmcnt(0)\ns_mov_b32 s98, s50")
    a(f"""
    s_and_b32 s3, s2, 7
    s_lshr_b32 s21, s2, 3
    s_cmp_lg_u32 s3, 0
    s_cbranch_scc1 {lwk}
    s_mov_b32 s2, s21
    """)
    gen_rec_role(a, lend)
    a.label(lwk)
    a("s_mul_i32 s29, s21, 7\ns_add_u32 s29, s29, s3\ns_sub_u32 s29, s29, 1")
    gen_worker_role(a, lend)
    a.label(lend)
    if STAMP:
        a(f"""
        s_memrealtime s[50:51]
        s_lshl_b32 s52, s99, 3
        s_add_u32 s52, s52, {hex(DBGW + (1<<20))}
        s_waitcnt lgkmcnt(0)
        s_mov_b64 exec, 1
        v_mov_b32 v0, s50
        v_mov_b32 v2, s52
        buffer_store_dword v0, v2, s[8:11], 0 offen
        v_mov_b32 v0, s98
        buffer_store_dword v0, v2, s[8:11], 0 offen offset:4
        """)
    a.label(lexit)
    a("s_endpgm")
    return kernel_desc(name, 256)
```

```python
import sys, os

NAME = "sequential_preLN__memory_aug_recurrent_mem_tr__glu_gated_bilinear__prompt"

MB = 1 << 20
XN   = 0
WQKV = 2 * MB
WO   = 14 * MB
WG   = 18 * MB
WU   = 20 * MB
WD   = 22 * MB
QK   = 24 * MB
VT   = 56 * MB
KM   = 72 * MB
VMT  = 76 * MB
OB   = 80 * MB
HB   = 96 * MB
HN   = 98 * MB
HH   = 100 * MB
M2   = 112 * MB
H1   = 128 * MB
WS_BYTES = 256 * MB

KA_X, KA_MEM0, KA_WQ, KA_WK, KA_WV, KA_WO, KA_SEG, KA_BX, KA_WG, KA_WU, KA_WD, KA_OUT, KA_DBG, KA_WS = [8*i for i in range(14)]

class Asm:
    def __init__(self):
        self.lines = []
        self.lbl = 0
    def __call__(self, s):
        for ln in s.strip("\n").split("\n"):
            self.lines.append("    " + ln.strip())
    def label(self, s):
        self.lines.append(s + ":")
    def newlabel(self, p="L"):
        self.lbl += 1
        return f".{p}{self.lbl}"
    def text(self):
        return "\n".join(self.lines) + "\n"

def srd(a, d, base_lo, nbytes):
    a(f"s_mov_b32 s{d}, s{base_lo}")
    a(f"s_and_b32 s{d+1}, s{base_lo+1}, 0xffff")
    a(f"s_mov_b32 s{d+2}, {hex(nbytes)}")
    a(f"s_mov_b32 s{d+3}, 0x00020000")

def kernel_header(a, name):
    a.lines.append(f".globl {name}")
    a.lines.append(".p2align 8")
    a.lines.append(f".type {name},@function")
    a.label(name)

def kernel_desc(name, vgpr, sgpr=102):
    acc = (vgpr + 3) // 4 * 4
    return f""".p2align 6
.amdhsa_kernel {name}
  .amdhsa_next_free_vgpr {vgpr}
  .amdhsa_next_free_sgpr {sgpr}
  .amdhsa_accum_offset {acc}
  .amdhsa_group_segment_fixed_size 0
  .amdhsa_kernarg_size 112
  .amdhsa_user_sgpr_count 2
  .amdhsa_user_sgpr_kernarg_segment_ptr 1
  .amdhsa_system_sgpr_workgroup_id_x 1
.end_amdhsa_kernel
"""

def allreduce16(a, op, r, t):
    for sh in (8, 4, 2, 1):
        a(f"s_nop 1")
        a(f"{op}_dpp v{t}, v{r}, v{r} row_ror:{sh} row_mask:0xf bank_mask:0xf")
        a(f"s_nop 1")
        a(f"v_mov_b32 v{r}, v{t}")

def allreduce_groups(a, op, r, t):
    a(f"v_mov_b32 v{t}, v{r}")
    a("s_nop 1")
    a(f"v_permlane16_swap_b32 v{r}, v{t}")
    a("s_nop 1")
    a(f"{op} v{r}, v{r}, v{t}")
    a(f"v_mov_b32 v{t}, v{r}")
    a("s_nop 1")
    a(f"v_permlane32_swap_b32 v{r}, v{t}")
    a("s_nop 1")
    a(f"{op} v{r}, v{r}, v{t}")

def emit_ln_row(a, s_src, src_off, s_dst, dst_off, vrow, sc1=False, lds_addr=None):
    a(f"""
    v_lshlrev_b32 v2, 10, v{vrow}
    v_lshl_add_u32 v2, v1, 4, v2
    v_add_u32 v3, {hex(src_off)}, v2
    buffer_load_dwordx4 v[8:11], v3, s[{s_src}:{s_src+3}], 0 offen{" sc1" if sc1 else ""}
    s_waitcnt vmcnt(0)
    """)
    for i in range(4):
        a(f"v_lshlrev_b32 v{12+2*i}, 16, v{8+i}")
        a(f"v_and_b32 v{13+2*i}, 0xffff0000, v{8+i}")
    a("v_add_f32 v20, v12, v13")
    for i in range(2, 8):
        a(f"v_add_f32 v20, v20, v{12+i}")
    allreduce16(a, "v_add_f32", 20, 21)
    allreduce_groups(a, "v_add_f32", 20, 21)
    a("v_mul_f32 v20, 0x3b000000, v20")
    for i in range(8):
        a(f"v_sub_f32 v{22+i}, v{12+i}, v20")
    a("v_mul_f32 v30, v22, v22")
    for i in range(1, 8):
        a(f"v_fmac_f32 v30, v{22+i}, v{22+i}")
    allreduce16(a, "v_add_f32", 30, 21)
    allreduce_groups(a, "v_add_f32", 30, 21)
    a("v_mul_f32 v30, 0x3b000000, v30")
    a("v_cvt_pk_bf16_f32 v31, v20, v30")
    a("v_lshlrev_b32 v20, 16, v31")
    a("v_and_b32 v30, 0xffff0000, v31")
    a("v_add_f32 v30, 0x3727c5ac, v30")
    a("v_cvt_pk_bf16_f32 v31, v30, v30")
    a("v_and_b32 v30, 0xffff0000, v31")
    a("v_sqrt_f32 v30, v30")
    a("s_nop 0")
    a("v_cvt_pk_bf16_f32 v31, v30, v30")
    a("v_and_b32 v30, 0xffff0000, v31")
    a("v_rcp_f32 v30, v30")
    a("s_nop 0")
    for i in range(8):
        a(f"v_sub_f32 v{22+i}, v{12+i}, v20")
    for i in range(4):
        a(f"v_cvt_pk_bf16_f32 v{8+i}, v{22+2*i}, v{23+2*i}")
    for i in range(4):
        a(f"v_lshlrev_b32 v{12+2*i}, 16, v{8+i}")
        a(f"v_and_b32 v{13+2*i}, 0xffff0000, v{8+i}")
    for i in range(8):
        a(f"v_mul_f32 v{12+i}, v{12+i}, v30")
    for i in range(4):
        a(f"v_cvt_pk_bf16_f32 v{8+i}, v{12+2*i}, v{13+2*i}")
    if lds_addr is not None:
        a(f"ds_write_b128 v{lds_addr}, v[8:11]")
    else:
        a(f"v_add_u32 v3, {hex(dst_off)}, v2")
        a(f"buffer_store_dwordx4 v[8:11], v3, s[{s_dst}:{s_dst+3}], 0 offen")

N_LN = 512
REPACK = [
    (KA_WQ, 512, 4096, WQKV + 0 * 4 * MB, 'nk'),
    (KA_WK, 512, 4096, WQKV + 1 * 4 * MB, 'nk'),
    (KA_WV, 512, 4096, WQKV + 2 * 4 * MB, 'nk'),
    (KA_WO, 4096, 512, WO, 'nk'),
    (KA_WG, 512, 1792, WG, 'nk'),
    (KA_WU, 512, 1792, WU, 'nk'),
    (KA_WD, 1792, 512, WD, 'kn'),
]
H1B = 32 * MB
N_FILL = H1B // (256 * 64) + (64 * 8192) // (256 * 64)

def prep_grid():
    return N_LN + sum(K * N // 8 // 256 for _, K, N, _, _ in REPACK) + N_FILL + 4

def gen_prep(a):
    name = "prep_kernel"
    kernel_header(a, name)
    a(f"""
    s_load_dwordx2 s[4:5], s[0:1], {KA_WS}
    s_load_dwordx2 s[6:7], s[0:1], {KA_X}
    v_and_b32 v1, 63, v0
    v_lshrrev_b32 v4, 6, v0
    s_waitcnt lgkmcnt(0)
    """)
    srd(a, 8, 4, WS_BYTES)
    srd(a, 12, 6, 2 * MB)
    lnext = a.newlabel()
    a(f"s_cmp_ge_u32 s2, {N_LN}")
    a(f"s_cbranch_scc1 {lnext}")
    a("s_lshl_b32 s3, s2, 2")
    a("v_add_u32 v4, s3, v4")
    emit_ln_row(a, 12, 0, 8, XN, 4)
    a("s_endpgm")
    a.label(lnext)
    base = N_LN
    for (ka, K, N, dst, order) in REPACK:
        nwg = K * N // 8 // 256
        lnext = a.newlabel()
        a(f"s_cmp_ge_u32 s2, {base + nwg}")
        a(f"s_cbranch_scc1 {lnext}")
        a(f"s_load_dwordx2 s[6:7], s[0:1], {ka}")
        a(f"s_sub_u32 s3, s2, {base}")
        a("s_lshl_b32 s3, s3, 8")
        a("v_add_u32 v2, s3, v0")
        a("s_waitcnt lgkmcnt(0)")
        srd(a, 16, 6, K * N * 2)
        KK, NT = K // 32, N // 16
        a("v_lshrrev_b32 v3, 6, v2")
        if order == 'nk':
            sh = KK.bit_length() - 1
            assert 1 << sh == KK
            a(f"v_and_b32 v5, {KK-1}, v3")
            a(f"v_lshrrev_b32 v6, {sh}, v3")
        else:
            sh = NT.bit_length() - 1
            assert 1 << sh == NT
            a(f"v_and_b32 v6, {NT-1}, v3")
            a(f"v_lshrrev_b32 v5, {sh}, v3")
        a("v_and_b32 v7, 15, v1")
        a("v_lshl_add_u32 v6, v6, 4, v7")
        a("v_lshrrev_b32 v7, 4, v1")
        a("v_lshlrev_b32 v7, 3, v7")
        a("v_lshl_add_u32 v5, v5, 5, v7")
        a(f"s_mov_b32 s3, {N*2}")
        a("v_mul_lo_u32 v5, v5, s3")
        a("v_lshl_add_u32 v5, v6, 1, v5")
        for i in range(8):
            a(f"buffer_load_ushort v{8+i}, v5, s[16:19], 0 offen")
            if i < 7:
                a(f"v_add_u32 v5, {N*2}, v5")
        a("s_waitcnt vmcnt(0)")
        for i in range(4):
            a(f"v_lshl_or_b32 v{16+i}, v{9+2*i}, 16, v{8+2*i}")
        a("v_lshlrev_b32 v2, 4, v2")
        a(f"v_add_u32 v2, {hex(dst)}, v2")
        a("buffer_store_dwordx4 v[16:19], v2, s[8:11], 0 offen")
        a("s_endpgm")
        a.label(lnext)
        base += nwg
    lnext = a.newlabel()
    a(f"s_cmp_ge_u32 s2, {base + N_FILL}")
    a(f"s_cbranch_scc1 {lnext}")
    a(f"s_sub_u32 s3, s2, {base}")
    nh1 = (32 * MB) // (256 * 64)
    a("s_lshl_b32 s3, s3, 14")
    a(f"s_cmp_ge_u32 s3, {hex(H1B)}")
    a(f"s_mov_b32 s17, {hex(H1)}")
    a(f"s_cselect_b32 s16, {hex(M2 + 8192 - H1B)}, s17")
    a("s_add_u32 s3, s3, s16")
    a("v_lshl_add_u32 v2, v0, 4, s3")
    a("v_mov_b32 v8, -1\nv_mov_b32 v9, -1\nv_mov_b32 v10, -1\nv_mov_b32 v11, -1")
    for i in range(4):
        a(f"buffer_store_dwordx4 v[8:11], v2, s[8:11], 0 offen offset:0")
        if i < 3:
            a("v_add_u32 v2, 0x1000, v2")
    a("s_endpgm")
    a.label(lnext)
    base += N_FILL
    lend = a.newlabel()
    a(f"s_cmp_ge_u32 s2, {base + 2}")
    a(f"s_cbranch_scc1 {lend}")
    a(f"s_load_dwordx2 s[6:7], s[0:1], {KA_MEM0}")
    a(f"s_sub_u32 s3, s2, {base}")
    a("s_lshl_b32 s3, s3, 8")
    a("v_add_u32 v2, s3, v0")
    a("s_waitcnt lgkmcnt(0)")
    srd(a, 16, 6, 8192)
    a("v_and_b32 v3, 7, v2")
    a("v_lshrrev_b32 v5, 3, v2")
    a("v_lshlrev_b32 v3, 10, v3")
    a("v_lshl_add_u32 v3, v5, 4, v3")
    a("buffer_load_dwordx4 v[8:11], v3, s[16:19], 0 offen")
    a("v_lshlrev_b32 v2, 4, v2")
    a(f"v_add_u32 v2, {hex(M2)}, v2")
    a("s_waitcnt vmcnt(0)")
    for i in range(4):
        a(f"v_min_u32 v{8+i}, -2, v{8+i}")
    a("buffer_store_dwordx4 v[8:11], v2, s[8:11], 0 offen")
    a("s_endpgm")
    a.label(lend)
    lend2 = a.newlabel()
    a(f"s_cmp_ge_u32 s2, {base + 4}")
    a(f"s_cbranch_scc1 {lend2}")
    a(f"s_sub_u32 s3, s2, {base + 2}")
    a("s_lshl_b32 s3, s3, 14")
    a(f"s_add_u32 s3, s3, {hex(113*MB)}")
    a("v_lshl_add_u32 v2, v0, 4, s3")
    a("v_mov_b32 v8, 0\nv_mov_b32 v9, 0\nv_mov_b32 v10, 0\nv_mov_b32 v11, 0")
    for i in range(4):
        a("buffer_store_dwordx4 v[8:11], v2, s[8:11], 0 offen")
        if i < 3:
            a("v_add_u32 v2, 0x1000, v2")
    a.label(lend2)
    a("s_endpgm")
    return kernel_desc(name, 48)

def gemm_loop(a, MT, NTL, KKN, s_ws, transposed, vX, vW, XF, WF, ACC, sKX, sKW, sCnt, wstride=1024, nW=1, xsc1=False, xlds=False, D=2):
    nX, nWt = MT, NTL
    assert KKN % D == 0
    def loads(st):
        for nt in range(nWt):
            r = WF + (st * nWt + nt) * 4
            a(f"buffer_load_dwordx4 v[{r}:{r+3}], v{vW[nt]}, s[{s_ws}:{s_ws+3}], s{sKW} offen")
        for mt in range(nX):
            r = XF + (st * nX + mt) * 4
            if xlds:
                a(f"ds_read_b128 v[{r}:{r+3}], v{vX[mt]}")
                a(f"v_add_u32 v{vX[mt]}, 64, v{vX[mt]}")
            else:
                a(f"buffer_load_dwordx4 v[{r}:{r+3}], v{vX[mt]}, s[{s_ws}:{s_ws+3}], s{sKX} offen" + (" sc1" if xsc1 else ""))
        a(f"s_add_u32 s{sKX}, s{sKX}, 64")
        a(f"s_add_u32 s{sKW}, s{sKW}, {wstride}")
    def mfmas(st):
        for nt in range(nWt):
            for mt in range(nX):
                c = ACC + (nt * nX + mt) * 4
                w = WF + (st * nWt + nt) * 4
                x = XF + (st * nX + mt) * 4
                if transposed:
                    a(f"v_mfma_f32_16x16x32_bf16 v[{c}:{c+3}], v[{w}:{w+3}], v[{x}:{x+3}], v[{c}:{c+3}]")
                else:
                    a(f"v_mfma_f32_16x16x32_bf16 v[{c}:{c+3}], v[{x}:{x+3}], v[{w}:{w+3}], v[{c}:{c+3}]")
    for i in range(nWt * nX * 4):
        a(f"v_mov_b32 v{ACC+i}, 0")
    for st in range(D - 1):
        loads(st)
    a(f"s_mov_b32 s{sCnt}, {KKN//D}")
    lp = a.newlabel("gl")
    a.label(lp)
    if xlds:
        wt = f"s_waitcnt vmcnt({(D-1)*nWt}) lgkmcnt({min(15,(D-1)*nX)})"
    else:
        wt = f"s_waitcnt vmcnt({(D-1)*(nX+nWt)})"
    for st in range(D):
        loads((st + D - 1) % D)
        a(wt)
        mfmas(st)
    a(f"s_sub_u32 s{sCnt}, s{sCnt}, 1")
    a(f"s_cmp_lg_u32 s{sCnt}, 0")
    a(f"s_cbranch_scc1 {lp}")
    a("s_waitcnt vmcnt(0) lgkmcnt(0)")
    a("s_nop 7\ns_nop 7")

def gen_gemm1(a):
    name = "gemm1_kernel"
    kernel_header(a, name)
    lend = a.newlabel()
    a(f"""
    s_cmp_ge_u32 s2, 1536
    s_cbranch_scc1 {lend}
    s_load_dwordx2 s[4:5], s[0:1], {KA_WS}
    v_and_b32 v1, 63, v0
    v_lshrrev_b32 v2, 6, v0
    s_nop 0
    v_readfirstlane_b32 s20, v2
    s_waitcnt lgkmcnt(0)
    """)
    srd(a, 8, 4, WS_BYTES)
    a("""
    s_and_b32 s21, s2, 15
    s_lshr_b32 s22, s2, 4
    s_and_b32 s23, s20, 1
    s_lshr_b32 s24, s20, 1
    s_lshl_b32 s21, s21, 7
    s_lshl_b32 s23, s23, 6
    s_add_u32 s21, s21, s23            ; m0
    s_lshl_b32 s22, s22, 3
    s_lshl_b32 s24, s24, 2
    s_add_u32 s22, s22, s24
    v_and_b32 v2, 15, v1
    v_lshrrev_b32 v3, 4, v1
    v_add_u32 v4, s21, v2
    v_lshlrev_b32 v4, 10, v4
    v_lshl_add_u32 v4, v3, 4, v4
    """)
    a(f"v_add_u32 v4, {hex(XN)}, v4")
    for mt in range(4):
        a(f"v_add_u32 v{8+mt}, {mt*16*1024}, v4")
    a("s_lshl_b32 s25, s22, 14")
    a(f"s_add_u32 s25, s25, {hex(WQKV)}")
    a("v_lshl_add_u32 v4, v1, 4, s25")
    for nt in range(4):
        a(f"v_add_u32 v{12+nt}, {nt*16*1024}, v4")
    a("s_mov_b32 s26, 0\ns_mov_b32 s27, 0")
    XF, WF, ACC = 16, 48, 80
    lv = a.newlabel()
    a("s_cmp_ge_u32 s22, 512")
    a(f"s_cbranch_scc1 {lv}")
    gemm_loop(a, 4, 4, 16, 8, True, [8,9,10,11], [12,13,14,15], XF, WF, ACC, 26, 27, 28)
    a("""
    v_add_u32 v4, s21, v2
    v_lshlrev_b32 v4, 14, v4
    s_lshl_b32 s25, s22, 5
    v_lshl_add_u32 v4, v3, 3, v4
    v_add_u32 v4, s25, v4
    """)
    a(f"v_add_u32 v4, {hex(QK)}, v4")
    for mt in range(4):
        for nt in range(4):
            c = ACC + (nt * 4 + mt) * 4
            a(f"v_cvt_pk_bf16_f32 v{16+(nt&1)*2}, v{c}, v{c+1}")
            a(f"v_cvt_pk_bf16_f32 v{17+(nt&1)*2}, v{c+2}, v{c+3}")
            a(f"buffer_store_dwordx2 v[{16+(nt&1)*2}:{17+(nt&1)*2}], v4, s[8:11], 0 offen offset:{nt*32}")
            a("s_nop 1")
        if mt < 3:
            a(f"v_add_u32 v4, {hex(16*16384)}, v4")
    a("s_endpgm")
    a.label(lv)
    gemm_loop(a, 4, 4, 16, 8, False, [8,9,10,11], [12,13,14,15], XF, WF, ACC, 26, 27, 28)
    a("""
    s_sub_u32 s25, s22, 512
    s_lshl_b32 s25, s25, 4
    v_add_u32 v4, s25, v2
    v_lshlrev_b32 v4, 12, v4
    s_lshl_b32 s25, s21, 1
    v_lshl_add_u32 v4, v3, 3, v4
    v_add_u32 v4, s25, v4
    """)
    a(f"v_add_u32 v4, {hex(VT)}, v4")
    for nt in range(4):
        for mt in range(4):
            c = ACC + (nt * 4 + mt) * 4
            a(f"v_cvt_pk_bf16_f32 v{16+(mt&1)*2}, v{c}, v{c+1}")
            a(f"v_cvt_pk_bf16_f32 v{17+(mt&1)*2}, v{c+2}, v{c+3}")
            a(f"buffer_store_dwordx2 v[{16+(mt&1)*2}:{17+(mt&1)*2}], v4, s[8:11], 0 offen offset:{mt*32}")
            a("s_nop 1")
        if nt < 3:
            a(f"v_add_u32 v4, {hex(16*4096)}, v4")
    a.label(lend)
    a("s_endpgm")
    return kernel_desc(name, 144)

KERNELS = []
def build():
    a = Asm()
    descs = []
    launches = []
    descs.append(gen_prep(a));  launches.append(("prep_kernel", prep_grid(), 256, 0))
    import gen2, gen3
    descs.append(gen3.gen_mega(a)); launches.append(("mega_kernel", 256, 512, gen3.MEGA_LDS))
    if os.environ.get("TAILK"):
        gen2.add_tail(a, descs, launches)
    hdr = "".join(f"; @launch kernel={k} grid=({g},1,1) block=({b},1,1) lds={l}\n" for k, g, b, l in launches)
    out = hdr + '.amdgcn_target "amdgcn-amd-amdhsa--gfx950"\n.text\n' + a.text()
    out += '.section .rodata,"a"\n' + "".join(descs)
    return out

if __name__ == "__main__":
    sys.path.insert(0, "gen")
    txt = build()
    open(f"cdna_kernels/{NAME}.s", "w").write(txt)
    print("written", len(txt))
```

```python
from gen import *
import gen, os
from gen2 import round_scale, softmax_regs, SCALE, LOG2E, POLL_CAP, DBGW

STAMP = bool(os.environ.get("STAMP"))
FL = 113 * MB
FKV, FQ, FR, XT = FL, FL + 4096, FL + 8192, FL + 24576
FA, FH, FF = FL + 16384, FL + 17408, FL + 25600
FL_BYTES = 32768

MEMI, KXI, QI, KI, VI, VXI, WOI = 0, 8192, 16384, 18432, 20480, 24576, 32768
OI = VI
RED = QI
MEGA_LDS = WOI + 131072

def stamp(a, idx, wave=0):
    if not STAMP: return
    l = a.newlabel("st")
    a(f"""
    s_cmp_lg_u32 s20, {wave}
    s_cbranch_scc1 {l}
    s_memtime s[50:51]
    s_lshl_b32 s52, s2, 12
    s_lshl_b32 s53, s30, 6
    s_add_u32 s52, s52, s53
    s_add_u32 s52, s52, {hex(DBGW + idx*4)}
    s_waitcnt lgkmcnt(0)
    s_mov_b64 s[54:55], exec
    s_mov_b64 exec, 1
    v_mov_b32 v0, s50
    v_mov_b32 v2, s52
    buffer_store_dword v0, v2, s[8:11], 0 offen
    s_mov_b64 exec, s[54:55]
    v_and_b32 v2, 15, v1
    """)
    a.label(l)

def chk(a, regs, tmp):
    a(f"v_max_u32 v{tmp}, v{regs[0]}, v{regs[1]}")
    for i in range(2, len(regs), 2):
        a(f"v_max3_u32 v{tmp}, v{tmp}, v{regs[i]}, v{regs[i+1]}")
    a(f"v_cmp_ne_u32 vcc, -1, v{tmp}")
    a("s_cmp_eq_u64 vcc, exec")

def wait_flag(a, saddr, vt):
    lp = a.newlabel("wf"); ld = a.newlabel("wfd")
    a(f"v_mov_b32 v{vt}, s{saddr}")
    a("s_mov_b32 s37, 0")
    a.label(lp)
    a(f"buffer_load_dword v{vt+1}, v{vt}, s[8:11], 0 offen sc1")
    a("s_waitcnt vmcnt(0)")
    a(f"v_readfirstlane_b32 s38, v{vt+1}")
    a("s_add_u32 s37, s37, 1")
    a("s_cmp_lg_u32 s38, 0")
    a(f"s_cbranch_scc1 {ld}")
    a("s_sleep 2")
    a(f"s_cmp_lt_u32 s37, {POLL_CAP*8}")
    a(f"s_cbranch_scc1 {lp}")
    a.label(ld)

def rec_loop(a, fast, lend):
    S1 = "" if fast else " sc1"
    def prefetch():
        a(f"s_lshl_b32 s21, s20, 11\ns_add_u32 s21, s21, {KXI}\ns_mov_b32 m0, s21\ns_nop 0")
        a("buffer_load_dwordx4 v15, s[8:11], s34 offen sc1 lds")
        a("s_add_u32 s21, s21, 1024\ns_mov_b32 m0, s21\nv_add_u32 v0, 64, v15")
        a("buffer_load_dwordx4 v0, s[8:11], s34 offen sc1 lds")
        a(f"s_lshl_b32 s21, s20, 10\ns_add_u32 s21, s21, {VXI}\ns_mov_b32 m0, s21\ns_nop 0")
        a("buffer_load_dwordx4 v16, s[8:11], s35 offen sc1 lds")
        a("s_add_u32 s21, s21, 4096\ns_mov_b32 m0, s21\nv_add_u32 v0, 0x40000, v16")
        a("buffer_load_dwordx4 v0, s[8:11], s35 offen sc1 lds")
    def wait_kv(seg_sreg_expr):
        pass
    lx = a.newlabel("ip")
    a("s_cmp_ge_u32 s20, 4")
    a(f"s_cbranch_scc1 {lx}")
    a(f"s_lshl_b32 s21, s2, 2\ns_add_u32 s21, s21, {hex(FKV)}")
    wait_flag(a, 21, 20)
    prefetch()
    a.label(lx)
    lstep = a.newlabel("step")
    a.label(lstep)
    stamp(a, 0, 4)
    lg = a.newlabel("g1"); lb1 = a.newlabel("b1")
    a("s_cmp_ge_u32 s20, 4")
    a(f"s_cbranch_scc1 {lg}")
    a(f"s_branch {lb1}")
    a.label(lg)
    lp = a.newlabel("p2"); ld0 = a.newlabel("p2a"); ld1 = a.newlabel("p2b"); lj = a.newlabel("p2j")
    def ld2(b):
        a(f"buffer_load_dwordx4 v[{20+b*8}:{23+b*8}], v8, s[8:11], s31 offen sc1")
        a(f"buffer_load_dwordx4 v[{24+b*8}:{27+b*8}], v8, s[8:11], s31 offen offset:1024 sc1")
    a("s_mov_b32 s36, 0")
    ld2(0)
    a.label(lp)
    ld2(1)
    a("s_waitcnt vmcnt(2)")
    chk(a, list(range(20, 28)), 36)
    a(f"s_cbranch_scc1 {ld0}")
    ld2(0)
    a("s_waitcnt vmcnt(2)")
    chk(a, list(range(28, 36)), 36)
    a(f"s_cbranch_scc1 {ld1}")
    a(f"s_add_u32 s36, s36, 1\ns_cmp_lt_u32 s36, {POLL_CAP}\ns_cbranch_scc1 {lp}\ns_branch {ld0}")
    a.label(ld1)
    a("ds_write_b128 v9, v[28:31]")
    a("ds_write_b128 v9, v[32:35] offset:1024")
    a(f"s_branch {lj}")
    a.label(ld0)
    a("ds_write_b128 v9, v[20:23]")
    a("ds_write_b128 v9, v[24:27] offset:1024")
    a.label(lj)
    a("s_waitcnt vmcnt(0)")
    a.label(lb1)
    stamp(a, 1, 4)
    a("s_waitcnt lgkmcnt(0)")
    a("s_barrier")
    stamp(a, 2, 4)
    lw2 = a.newlabel("wm2")
    a("s_cmp_lt_u32 s20, 4")
    a(f"s_cbranch_scc1 {lw2}")
    if os.environ.get("NOWARM"):
        a(f"s_branch {lw2}")
    a("buffer_load_dword v62, v12, s[8:11], s32 offen sc1")
    a("s_add_u32 s21, s31, 8192")
    a("v_lshlrev_b32 v0, 4, v1")
    a("v_sub_u32 v0, v8, v0")
    a("v_lshl_add_u32 v0, v1, 5, v0")
    a("buffer_load_dword v63, v0, s[8:11], s21 offen sc1")
    a.label(lw2)
    def memloop(body, accz):
        for i in accz:
            a(f"v_mov_b32 v{i}, 0")
        a("ds_read_b128 v[20:23], v4")
        a("ds_read_b128 v[24:27], v4 offset:512")
        a("ds_read_b128 v[28:31], v4 offset:1024")
        for kk in range(16):
            cur = 20 + (kk & 3) * 4
            nxt = 20 + ((kk + 3) & 3) * 4
            if kk < 13:
                a(f"ds_read_b128 v[{nxt}:{nxt+3}], v4 offset:{(kk+3)*512}")
                a("s_waitcnt lgkmcnt(3)")
            else:
                a(f"s_waitcnt lgkmcnt({15-kk})")
            body(kk, cur)
    def qk_body(kk, cur):
        a(f"v_mfma_f32_16x16x32_bf16 v[36:39], v[{64+kk*4}:{67+kk*4}], v[{cur}:{cur+3}], v[36:39]")
        a(f"v_mfma_f32_16x16x32_bf16 v[40:43], v[{128+kk*4}:{131+kk*4}], v[{cur}:{cur+3}], v[40:43]")
    memloop(qk_body, range(36, 44))
    a("s_nop 7\ns_nop 1")
    a("""
    v_cvt_pk_bf16_f32 v20, v36, v37
    v_cvt_pk_bf16_f32 v21, v38, v39
    v_cvt_pk_bf16_f32 v22, v40, v41
    v_cvt_pk_bf16_f32 v23, v42, v43
    """)
    a(f"ds_write_b64 v6, v[20:21] offset:{QI}")
    a(f"ds_write_b64 v6, v[22:23] offset:{KI}")
    a("buffer_store_dwordx2 v[22:23], v13, s[8:11], s33 offen sc1")
    def v_body(kk, cur):
        a(f"v_mfma_f32_16x16x32_bf16 v[44:47], v[{cur}:{cur+3}], v[{192+kk*4}:{195+kk*4}], v[44:47]")
    def v_finish(publish):
        a("s_nop 7\ns_nop 1")
        a("v_cvt_pk_bf16_f32 v18, v44, v45")
        a("v_cvt_pk_bf16_f32 v19, v46, v47")
        if publish:
            a("s_lshl_b32 s21, s20, 9")
            a("v_lshl_add_u32 v0, v1, 3, s21")
            a(f"ds_write_b64 v0, v[18:19] offset:{VI}")
        a("buffer_store_dwordx2 v[18:19], v14, s[8:11], s33 offen sc1")
    stamp(a, 3, 4)
    llast = a.newlabel("last")
    a("s_cmp_eq_u32 s30, 63")
    a(f"s_cbranch_scc1 {llast}")
    lnw2 = a.newlabel("nw2")
    a("s_cmp_ge_u32 s20, 4")
    a(f"s_cbranch_scc1 {lnw2}")
    a("s_waitcnt vmcnt(1)")
    a.label(lnw2)
    a("s_waitcnt lgkmcnt(0)")
    a("s_barrier")
    stamp(a, 4, 4)
    lnf = a.newlabel("nf")
    a("s_cmp_lg_u32 s20, 5")
    a(f"s_cbranch_scc1 {lnf}")
    a("s_cmp_eq_u32 s30, 0")
    a(f"s_cbranch_scc1 {lnf}")
    a(f"s_lshl_b32 s21, s30, 7\ns_lshl_b32 s22, s2, 2\ns_add_u32 s21, s21, s22\ns_add_u32 s21, s21, {hex(FR - 128)}")
    a("v_mov_b32 v36, s21\nv_mov_b32 v37, 1")
    a("s_mov_b64 s[54:55], exec\ns_mov_b64 exec, 1")
    a("buffer_store_dword v37, v36, s[8:11], 0 offen sc1")
    a("s_mov_b64 exec, s[54:55]")
    a.label(lnf)
    lsk3 = a.newlabel("sk3"); lp3 = a.newlabel("p3")
    a("s_cmp_lt_u32 s20, 4")
    a(f"s_cbranch_scc1 {lp3}")
    memloop(v_body, range(44, 48))
    v_finish(True)
    a("s_waitcnt lgkmcnt(0)")
    a("s_barrier")
    a(f"s_branch {lsk3}")
    a.label(lp3)
    for kk in range(4):
        a(f"ds_read_b128 v[{20+kk*4}:{23+kk*4}], v5 offset:{QI + kk*512}")
    a(f"v_lshlrev_b32 v0, 4, v1")
    seq = [(0, kk) for kk in range(4)] + [(1, kk) for kk in range(4)] + [(2, kk) for kk in range(4)]
    SA = 36
    def rd(i):
        t, kk = seq[i]
        r = 48 + (i & 3) * 4
        if t == 0:
            a(f"ds_read_b128 v[{r}:{r+3}], v5 offset:{KI + kk*512}")
        else:
            a(f"ds_read_b128 v[{r}:{r+3}], v0 offset:{KXI + ((t-1)*4+kk)*1024}")
    for i in range(3):
        rd(i)
    for i in range(12):
        a(f"v_mov_b32 v{SA+i}, 0")
    for i in range(12):
        t, kk = seq[i]
        r = 48 + (i & 3) * 4
        if i < 9:
            rd(i + 3)
            a("s_waitcnt lgkmcnt(3)")
        else:
            a(f"s_waitcnt lgkmcnt({11-i})")
        a(f"v_mfma_f32_16x16x32_bf16 v[{SA+t*4}:{SA+3+t*4}], v[{r}:{r+3}], v[{20+kk*4}:{23+kk*4}], v[{SA+t*4}:{SA+3+t*4}]")
    for i in range(4):
        a(f"ds_read_b128 v[{48+i*4}:{51+i*4}], v4 offset:{i*512}")
    for i in range(4):
        a(f"v_mov_b32 v{24+i}, 0")
    a("s_nop 4")
    sm = Asm()
    S = list(range(SA, SA + 12))
    round_scale(sm, S, 20)
    sm("v_mov_b32 v20, 0xff800000")
    for r in range(SA, SA + 4):
        sm(f"v_cndmask_b32 v{r}, v20, v{r}, s[40:41]")
    softmax_regs(sm, S, 21, 22, 23)
    lines = sm.lines
    step = max(1, len(lines) // 17)
    kk = 0
    for idx, ln in enumerate(lines):
        a.lines.append(ln)
        if kk < 16 and idx % step == step - 1:
            cur = 48 + (kk & 3) * 4
            a(f"s_waitcnt lgkmcnt({min(3, 15-kk)})")
            a(f"v_mfma_f32_16x16x32_bf16 v[24:27], v[{cur}:{cur+3}], v[{192+kk*4}:{195+kk*4}], v[24:27]")
            if kk + 4 < 16:
                a(f"ds_read_b128 v[{cur}:{cur+3}], v4 offset:{(kk+4)*512}")
            kk += 1
    assert kk == 16
    for i in range(6):
        a(f"v_cvt_pk_bf16_f32 v{28+i}, v{SA+2*i}, v{SA+1+2*i}")
    a("s_nop 3")
    a("v_cvt_pk_bf16_f32 v18, v24, v25")
    a("v_cvt_pk_bf16_f32 v19, v26, v27")
    a("buffer_store_dwordx2 v[18:19], v14, s[8:11], s33 offen sc1")
    a("s_barrier")
    a("s_lshl_b32 s21, s20, 9")
    a("v_lshl_add_u32 v0, v1, 3, s21")
    a(f"ds_read_b64 v[48:49], v0 offset:{VI + 2048}")
    a("s_lshl_b32 s21, s20, 10")
    a("v_lshlrev_b32 v0, 6, v2")
    a("v_lshl_add_u32 v0, v3, 3, v0")
    a("v_add_u32 v0, s21, v0")
    a(f"ds_read_b64 v[60:61], v0 offset:{VXI}")
    a(f"ds_read_b64 v[62:63], v0 offset:{VXI+32}")
    a(f"ds_read_b64 v[52:53], v0 offset:{VXI+4096}")
    a(f"ds_read_b64 v[54:55], v0 offset:{VXI+4096+32}")
    for i in range(8):
        a(f"v_mov_b32 v{36+i}, 0")
    a("s_waitcnt lgkmcnt(0)")
    a("v_mfma_f32_16x16x16_bf16 v[36:39], v[18:19], v[28:29], v[36:39]")
    a("v_mfma_f32_16x16x16_bf16 v[40:43], v[48:49], v[28:29], v[40:43]")
    a("s_nop 7")
    a("v_mfma_f32_16x16x32_bf16 v[36:39], v[60:63], v[30:33], v[36:39]")
    a("v_mfma_f32_16x16x32_bf16 v[40:43], v[52:55], v[30:33], v[40:43]")
    a("s_nop 7\ns_nop 1")
    a("v_cvt_pk_bf16_f32 v20, v36, v37")
    a("v_cvt_pk_bf16_f32 v21, v38, v39")
    a("v_cvt_pk_bf16_f32 v22, v40, v41")
    a("v_cvt_pk_bf16_f32 v23, v42, v43")
    a(f"ds_write_b64 v6, v[20:21] offset:{OI}")
    a(f"ds_write_b64 v6, v[22:23] offset:{OI + 1024}")
    a("s_waitcnt lgkmcnt(0)")
    a.label(lsk3)
    stamp(a, 5, 4)
    items = [(j, kk) for j in range(4) for kk in range(4)]
    RD = 5
    def rdw(i):
        j, kk = items[i]
        r = 36 + (i % RD) * 4
        a(f"ds_read_b128 v[{r}:{r+3}], v7 offset:{j*4096 + kk*1024}")
    for i in range(RD - 1):
        rdw(i)
    a("s_waitcnt vmcnt(2)")
    a("s_barrier")
    stamp(a, 6, 4)
    for kk in range(4):
        a(f"ds_read_b128 v[{20+kk*4}:{23+kk*4}], v5 offset:{OI + kk*512}")
    a("v_mov_b32 v0, v10")
    for i in range(16):
        j, kk = items[i]
        r = 36 + (i % RD) * 4
        acc = 56 if (j & 1) == 0 else 60
        if kk == 0:
            for t in range(4):
                a(f"v_mov_b32 v{acc+t}, 0")
        if i + RD - 1 < 16:
            rdw(i + RD - 1)
            a("s_waitcnt lgkmcnt(0)" if i == 0 else f"s_waitcnt lgkmcnt({RD-1})")
        else:
            a(f"s_waitcnt lgkmcnt({15-i})")
        a(f"v_mfma_f32_16x16x32_bf16 v[{acc}:{acc+3}], v[{r}:{r+3}], v[{20+kk*4}:{23+kk*4}], v[{acc}:{acc+3}]")
        if kk == 3:
            a("s_nop 7\ns_nop 1")
            for t in range(4):
                a(f"v_min_u32 v{acc+t}, -2, v{acc+t}")
            a(f"buffer_store_dwordx4 v[{acc}:{acc+3}], v0, s[8:11], s32 offen{S1}")
            a("v_add_u32 v0, 0x4000, v0")
    stamp(a, 7, 4)
    lg5 = a.newlabel("g5"); lb4 = a.newlabel("b4")
    a("s_cmp_ge_u32 s20, 4")
    a(f"s_cbranch_scc1 {lg5}")
    a("s_add_u32 s34, s34, 0x80000")
    a("s_add_u32 s35, s35, 64")
    a("s_add_u32 s21, s30, 1\ns_and_b32 s22, s21, 3\ns_cmp_lg_u32 s22, 0")
    lnk = a.newlabel("nk")
    a(f"s_cbranch_scc1 {lnk}")
    a(f"s_lshl_b32 s21, s21, 5\ns_lshl_b32 s22, s2, 2\ns_add_u32 s21, s21, s22\ns_add_u32 s21, s21, {hex(FKV)}")
    wait_flag(a, 21, 36)
    a.label(lnk)
    prefetch()
    a(f"s_branch {lb4}")
    a.label(lg5)
    lp = a.newlabel("p1"); ld0 = a.newlabel("p1a"); ld1 = a.newlabel("p1b"); lj = a.newlabel("p1j")
    def ld(b):
        for i in range(4):
            a(f"buffer_load_dwordx4 v[{20+b*16+i*4}:{23+b*16+i*4}], v11, s[8:11], s{60+i} offen sc1")
    for i in range(4):
        a(f"s_add_u32 s{60+i}, s32, {i*4096}")
    a("s_mov_b32 s36, 0")
    ld(0)
    a.label(lp)
    ld(1)
    a("s_waitcnt vmcnt(4)")
    chk(a, list(range(20, 36)), 52)
    a(f"s_cbranch_scc1 {ld0}")
    ld(0)
    a("s_waitcnt vmcnt(4)")
    chk(a, list(range(36, 52)), 52)
    a(f"s_cbranch_scc1 {ld1}")
    a(f"s_add_u32 s36, s36, 1\ns_cmp_lt_u32 s36, {POLL_CAP}\ns_cbranch_scc1 {lp}\ns_branch {ld0}")
    for (lab, b) in ((ld1, 36), (ld0, 20)):
        a.label(lab)
        for i in range(4):
            a(f"v_add_f32 v{52+i}, v{b+i}, v{b+4+i}")
            a(f"v_add_f32 v{56+i}, v{b+8+i}, v{b+12+i}")
        for i in range(4):
            a(f"v_add_f32 v{52+i}, v{52+i}, v{56+i}")
        if lab == ld1:
            a(f"s_branch {lj}")
    a.label(lj)
    stamp(a, 8, 4)
    a("s_nop 1")
    for i in range(4):
        a(f"v_add_f32_dpp v{56+i}, v{52+i}, v{52+i} row_ror:8 row_mask:0xf bank_mask:0xf")
    for i in range(4):
        a(f"v_mov_b32 v{52+i}, v{56+i}")
    a("s_nop 1")
    for i in range(4):
        a(f"v_permlane16_swap_b32 v{52+i}, v{56+i}")
    a("s_nop 1")
    for i in range(4):
        a(f"v_add_f32 v{52+i}, v{52+i}, v{56+i}")
    for i in range(4):
        a(f"v_mov_b32 v{56+i}, v{52+i}")
    a("s_nop 1")
    for i in range(4):
        a(f"v_permlane32_swap_b32 v{52+i}, v{56+i}")
    a("s_nop 1")
    for i in range(4):
        a(f"v_add_f32 v{52+i}, v{52+i}, v{56+i}")
    a("v_cvt_pk_bf16_f32 v56, v52, v53")
    a("v_cvt_pk_bf16_f32 v57, v54, v55")
    a("v_min_u32 v56, -2, v56")
    a("v_min_u32 v57, -2, v57")
    a(f"buffer_store_dwordx2 v[56:57], v17, s[8:11], s31 offen{S1}")
    stamp(a, 9, 4)
    stamp(a, 10, 4)
    a.label(lb4)
    a(f"""
    s_add_u32 s30, s30, 1
    s_add_u32 s31, s31, 8192
    s_add_u32 s32, s32, 0x80000
    s_add_u32 s33, s33, 0x10000
    s_branch {lstep}
    """)
    a.label(llast)
    memloop(v_body, range(44, 48))
    v_finish(False)
    a("s_waitcnt vmcnt(0)")
    a("s_barrier")
    a("s_cmp_lg_u32 s20, 5")
    a(f"s_cbranch_scc1 {lend}")
    a(f"s_lshl_b32 s22, s2, 2\ns_add_u32 s21, s22, {hex(FR + 63*128)}")
    a("v_mov_b32 v36, s21\nv_mov_b32 v37, 1")
    a("s_mov_b64 exec, 1")
    a("buffer_store_dword v37, v36, s[8:11], 0 offen sc1")
    a("v_subrev_u32 v36, 128, v36")
    a("buffer_store_dword v37, v36, s[8:11], 0 offen sc1")
    a(f"s_branch {lend}")

def gen_rec_role(a, lend):
    a("""
    v_and_b32 v2, 15, v1          ; m
    v_lshrrev_b32 v3, 4, v1       ; g
    v_and_b32 v18, 7, v1          ; m&7
    """)
    a(f"""
    s_getreg_b32 s21, hwreg(HW_REG_XCC_ID)
    s_add_u32 s21, s21, 1
    s_lshl_b32 s22, s2, 2
    s_add_u32 s22, s22, {hex(XT)}
    v_mov_b32 v20, s22
    v_mov_b32 v21, s21
    s_mov_b64 exec, 1
    buffer_store_dword v21, v20, s[8:11], 0 offen sc1
    s_mov_b64 exec, -1
    """)
    a("s_lshl_b32 s21, s2, 3\ns_add_u32 s21, s21, s20\ns_lshl_b32 s21, s21, 14")
    a("v_lshl_add_u32 v19, v1, 4, s21")
    for j in range(3):
        a(f"v_add_u32 v20, {hex(WQKV + j*4*MB)}, v19")
        for kk in range(16):
            if kk % 4 == 0 and kk:
                a("v_add_u32 v20, 0x1000, v20")
            r = 64 + j*64 + kk*4
            a(f"buffer_load_dwordx4 v[{r}:{r+3}], v20, s[8:11], 0 offen offset:{(kk%4)*1024}")
    a("s_lshl_b32 s21, s20, 19")
    a("s_lshl_b32 s22, s2, 12")
    a("s_add_u32 s21, s21, s22")
    a(f"s_add_u32 s21, s21, {hex(WO)}")
    a("v_lshl_add_u32 v20, v1, 4, s21")
    a("s_lshl_b32 s22, s20, 14")
    a(f"s_add_u32 s22, s22, {WOI}")
    a("v_lshl_add_u32 v21, v1, 4, s22")
    for j in range(4):
        for kk in range(4):
            a(f"buffer_load_dwordx4 v[{24+kk*4}:{27+kk*4}], v20, s[8:11], 0 offen offset:{kk*1024}")
        a("s_waitcnt vmcnt(0)")
        for kk in range(4):
            a(f"ds_write_b128 v21, v[{24+kk*4}:{27+kk*4}] offset:{j*4096 + kk*1024}")
        if j < 3:
            a(f"v_add_u32 v20, {hex(128*1024)}, v20")
        a("s_waitcnt lgkmcnt(0)")
    a(f"""
    v_lshlrev_b32 v5, 3, v3
    v_add_lshl_u32 v5, v5, v18, 4        ; (g*8+(m&7))*16
    v_add_u32 v4, {MEMI}, v5
    s_and_b32 s21, s20, 1
    s_lshl_b32 s21, s21, 1
    v_lshrrev_b32 v6, 1, v3
    v_add_u32 v6, s21, v6
    v_lshlrev_b32 v6, 7, v6
    v_lshl_add_u32 v6, v18, 4, v6
    v_and_b32 v19, 1, v3
    v_lshl_add_u32 v6, v19, 3, v6
    s_lshr_b32 s21, s20, 1
    s_lshl_b32 s21, s21, 9
    v_add_u32 v6, s21, v6
    s_lshl_b32 s21, s20, 14
    s_add_u32 s21, s21, {WOI}
    v_lshl_add_u32 v7, v1, 4, s21
    s_and_b32 s23, s20, 3
    s_lshl_b32 s21, s23, 11
    v_lshl_add_u32 v9, v1, 4, s21
    v_add_u32 v8, {hex(M2)}, v9
    v_add_u32 v9, {MEMI}, v9
    s_lshl_b32 s21, s20, 16               ; (4w)*16384
    s_lshl_b32 s22, s2, 9
    s_add_u32 s21, s21, s22
    s_add_u32 s21, s21, {hex(H1)}
    v_add_u32 v10, s21, v5
    s_lshl_b32 s21, s2, 14
    s_lshl_b32 s22, s23, 7
    s_add_u32 s21, s21, s22
    s_add_u32 s21, s21, {hex(H1)}
    v_lshrrev_b32 v11, 3, v1
    v_lshlrev_b32 v11, 9, v11
    v_lshl_add_u32 v11, v18, 4, v11
    v_add_u32 v11, s21, v11
    v_and_b32 v12, 31, v1
    v_lshl_add_u32 v12, v12, 9, s21
    s_lshl_b32 s21, s2, 8
    s_lshl_b32 s22, s20, 5
    s_add_u32 s21, s21, s22               ; (h*128+16w)*2
    v_lshlrev_b32 v13, 13, v18
    v_lshl_add_u32 v13, v3, 3, v13
    v_add_u32 v13, s21, v13
    v_add_u32 v13, {hex(KM)}, v13
    s_lshl_b32 s22, s21, 3                ; (h*128+16w)*16
    v_lshl_add_u32 v14, v2, 4, s22
    v_and_b32 v19, 1, v3
    v_lshl_add_u32 v14, v19, 3, v14
    v_add_u32 v14, {hex(VMT)}, v14
    s_lshr_b32 s21, s20, 1
    s_lshl_b32 s21, s21, 4
    v_add_u32 v15, s21, v2
    v_lshlrev_b32 v15, 14, v15
    s_lshl_b32 s21, s2, 8
    s_and_b32 s22, s20, 1
    s_lshl_b32 s22, s22, 7
    s_add_u32 s21, s21, s22
    s_add_u32 s21, s21, {hex(QK + 8192)}
    v_lshl_add_u32 v15, v3, 4, v15
    v_add_u32 v15, s21, v15
    s_lshl_b32 s21, s2, 7
    s_lshl_b32 s22, s20, 4
    s_add_u32 s21, s21, s22
    v_lshrrev_b32 v16, 2, v1
    v_add_u32 v16, s21, v16
    v_lshlrev_b32 v16, 12, v16
    v_and_b32 v19, 3, v1
    v_lshl_add_u32 v16, v19, 4, v16
    v_add_u32 v16, {hex(VT)}, v16
    s_lshr_b32 s21, s23, 1
    s_lshl_b32 s21, s21, 7
    s_and_b32 s22, s23, 1
    s_lshl_b32 s22, s22, 3
    s_add_u32 s21, s21, s22
    s_lshl_b32 s22, s2, 8
    s_add_u32 s21, s21, s22
    s_add_u32 s21, s21, {hex(M2 + 8192)}
    v_lshl_add_u32 v17, v18, 4, s21
    v_cmp_gt_u32 s[40:41], 2, v3
    s_mov_b32 s30, 0
    s_mov_b32 s31, 0
    s_mov_b32 s32, 0
    s_mov_b32 s33, 0
    s_mov_b32 s34, 0
    s_mov_b32 s35, 0
    """)
    lp = a.newlabel("xc")
    a(f"""
    v_and_b32 v20, 31, v1
    v_lshlrev_b32 v20, 2, v20
    v_add_u32 v20, {hex(XT)}, v20
    s_mov_b32 s36, 0
    """)
    a.label(lp)
    a(f"""
    buffer_load_dword v21, v20, s[8:11], 0 offen sc1
    s_add_u32 s36, s36, 1
    s_waitcnt vmcnt(0)
    v_cmp_eq_u32 vcc, 0, v21
    s_cmp_lt_u32 s36, {POLL_CAP}
    s_cselect_b64 s[44:45], vcc, 0
    s_cmp_lg_u64 s[44:45], 0
    s_cbranch_scc1 {lp}
    v_readfirstlane_b32 s21, v21
    s_nop 3
    v_cmp_ne_u32 vcc, s21, v21
    s_cmp_lg_u64 vcc, 0
    """)
    lslow = a.newlabel("slow")
    if os.environ.get("FORCESLOW"):
        a(f"s_branch {lslow}")
    a(f"s_cbranch_scc1 {lslow}")
    rec_loop(a, True, lend)
    a.label(lslow)
    rec_loop(a, False, lend)

def worker_gemm(a, s_nt0, s_m0, flag_s):
    a("s_barrier")
    a(f"""
    s_lshl_b32 s21, s20, 4
    s_add_u32 s22, s21, s{s_m0}
    s_lshl_b32 s22, s22, 10
    s_add_u32 s22, s22, {hex(XN)}
    v_lshl_add_u32 v4, v1, 4, s22
    s_mul_i32 s21, s21, 1040
    v_lshl_add_u32 v5, v1, 4, s21
    """)
    for half in range(2):
        for i in range(8):
            r = 16 + i*4
            if (half*8+i) % 4 == 0 and (half*8+i):
                a("v_add_u32 v4, 0x1000, v4")
            a(f"buffer_load_dwordx4 v[{r}:{r+3}], v4, s[8:11], 0 offen offset:{((half*8+i)%4)*1024}")
        for i in range(8):
            r = 16 + i*4
            a(f"s_waitcnt vmcnt({7-i})")
            a(f"ds_write_b128 v5, v[{r}:{r+3}] offset:{(half*8+i)*1040}")
    a("s_waitcnt lgkmcnt(0)")
    a("s_barrier")
    a(f"""
    s_lshl_b32 s25, s24, 1
    s_add_u32 s22, s{s_nt0}, s25
    s_mov_b32 s23, 1040
    v_mul_lo_u32 v4, v2, s23
    v_lshl_add_u32 v4, v3, 4, v4
    """)
    vX = [200+i for i in range(8)]
    for mt in range(8):
        a(f"v_add_u32 v{vX[mt]}, {mt*16*1040}, v4")
    a("s_lshl_b32 s25, s22, 14")
    a(f"s_add_u32 s25, s25, {hex(WQKV)}")
    a("v_lshl_add_u32 v4, v1, 4, s25")
    for nt in range(2):
        a(f"v_add_u32 v{12+nt}, {nt*16*1024}, v4")
    a("s_mov_b32 s26, 0\ns_mov_b32 s27, 0")
    XF, WF, ACC = 16, 80, 96
    lv = a.newlabel("wv"); ldn = a.newlabel("wdn")
    a("s_cmp_ge_u32 s22, 512")
    a(f"s_cbranch_scc1 {lv}")
    gemm_loop(a, 8, 2, 16, 8, True, vX, [12,13], XF, WF, ACC, 26, 27, 28, xlds=True)
    a(f"""
    v_add_u32 v4, s{s_m0}, v2
    v_lshlrev_b32 v4, 14, v4
    s_lshl_b32 s25, s22, 5
    v_lshl_add_u32 v4, v3, 3, v4
    v_add_u32 v4, s25, v4
    v_add_u32 v4, {hex(QK)}, v4
    """)
    for mt in range(8):
        for nt in range(2):
            c = ACC + (nt * 8 + mt) * 4
            a(f"v_cvt_pk_bf16_f32 v{16+nt*2}, v{c}, v{c+1}")
            a(f"v_cvt_pk_bf16_f32 v{17+nt*2}, v{c+2}, v{c+3}")
            a(f"buffer_store_dwordx2 v[{16+nt*2}:{17+nt*2}], v4, s[8:11], 0 offen offset:{nt*32} sc1")
            a("s_nop 1")
        if mt < 7:
            a(f"v_add_u32 v4, {hex(16*16384)}, v4")
    a(f"s_branch {ldn}")
    a.label(lv)
    gemm_loop(a, 8, 2, 16, 8, False, vX, [12,13], XF, WF, ACC, 26, 27, 28, xlds=True)
    a(f"""
    s_sub_u32 s25, s22, 512
    s_lshl_b32 s25, s25, 4
    v_add_u32 v4, s25, v2
    v_lshlrev_b32 v4, 12, v4
    s_lshl_b32 s25, s{s_m0}, 1
    v_lshl_add_u32 v4, v3, 3, v4
    v_add_u32 v4, s25, v4
    v_add_u32 v4, {hex(VT)}, v4
    """)
    for nt in range(2):
        for mt in range(8):
            c = ACC + (nt * 8 + mt) * 4
            a(f"v_cvt_pk_bf16_f32 v{16+(mt&1)*2}, v{c}, v{c+1}")
            a(f"v_cvt_pk_bf16_f32 v{17+(mt&1)*2}, v{c+2}, v{c+3}")
            a(f"buffer_store_dwordx2 v[{16+(mt&1)*2}:{17+(mt&1)*2}], v4, s[8:11], 0 offen offset:{mt*32} sc1")
            a("s_nop 1")
        if nt < 1:
            a(f"v_add_u32 v4, {hex(16*4096)}, v4")
    a.label(ldn)

def worker_attn(a):
    a(f"""
    v_and_b32 v4, 7, v1
    s_lshl_b32 s24, s23, 19
    s_lshl_b32 s25, s22, 8
    s_add_u32 s24, s24, s25
    s_add_u32 s24, s24, {hex(QK)}
    v_lshlrev_b32 v5, 14, v2
    v_lshl_add_u32 v5, v3, 4, v5
    v_add_u32 v5, s24, v5
    v_add_u32 v6, {hex(16*16384)}, v5
    s_lshl_b32 s24, s23, 16
    s_add_u32 s24, s24, s25
    s_add_u32 s24, s24, {hex(KM)}
    v_lshlrev_b32 v7, 13, v4
    v_lshl_add_u32 v7, v3, 4, v7
    v_add_u32 v7, s24, v7
    """)
    for tt in range(2):
        for kk in range(4):
            r = 16 + (tt*4+kk)*4
            a(f"buffer_load_dwordx4 v[{r}:{r+3}], v{5+tt}, s[8:11], 0 offen offset:{kk*64} sc1")
    for kk in range(4):
        r = 48 + kk*4
        a(f"buffer_load_dwordx4 v[{r}:{r+3}], v7, s[8:11], 0 offen offset:{kk*64} sc1")
    a("v_add_u32 v8, 0x2000, v5\nv_add_u32 v9, 0x2000, v6")
    for t in range(1, 3):
        for kk in range(4):
            r = 48 + (t*4+kk)*4
            a(f"buffer_load_dwordx4 v[{r}:{r+3}], v{7+t}, s[8:11], 0 offen offset:{kk*64} sc1")
    ACC = 96
    for i in range(24):
        a(f"v_mov_b32 v{ACC+i}, 0")
    a("s_waitcnt vmcnt(0)")
    for t in range(3):
        for tt in range(2):
            for kk in range(4):
                c = ACC + (t*2+tt)*4
                a(f"v_mfma_f32_16x16x32_bf16 v[{c}:{c+3}], v[{48+(t*4+kk)*4}:{51+(t*4+kk)*4}], v[{16+(tt*4+kk)*4}:{19+(tt*4+kk)*4}], v[{c}:{c+3}]")
    a("s_nop 7\ns_nop 1")
    a(f"""
    s_lshl_b32 s24, s23, 16
    s_lshl_b32 s25, s22, 11
    s_add_u32 s24, s24, s25
    s_add_u32 s24, s24, {hex(VMT)}
    v_and_b32 v10, 1, v3
    v_lshlrev_b32 v10, 3, v10
    v_lshl_add_u32 v10, v2, 4, v10
    v_add_u32 v10, s24, v10
    s_lshl_b32 s24, s22, 19
    s_lshl_b32 s25, s23, 6
    s_add_u32 s24, s24, s25
    s_add_u32 s24, s24, {hex(VT)}
    v_lshlrev_b32 v11, 12, v2
    v_lshl_add_u32 v11, v3, 3, v11
    v_add_u32 v11, s24, v11
    """)
    for et in range(8):
        r = 16 + et*6
        a(f"buffer_load_dwordx2 v[{r}:{r+1}], v10, s[8:11], 0 offen offset:{et*256} sc1")
        a(f"buffer_load_dwordx2 v[{r+2}:{r+3}], v11, s[8:11], 0 offen sc1")
        a(f"buffer_load_dwordx2 v[{r+4}:{r+5}], v11, s[8:11], 0 offen offset:32 sc1")
        if et < 7:
            a("v_add_u32 v11, 0x10000, v11")
    a("v_lshlrev_b32 v12, 2, v3")
    a("v_sub_u32 v12, v2, v12")
    a("v_cmp_gt_u32 s[40:41], 2, v3")
    a("v_mov_b32 v13, 0xff800000")
    P = 64
    for tt in range(2):
        S = [ACC + (t*2+tt)*4 + r for t in range(3) for r in range(4)]
        round_scale(a, S, 14)
        for r in range(4):
            a(f"v_cndmask_b32 v{S[r]}, v13, v{S[r]}, s[40:41]")
        for t in range(1, 3):
            for r in range(4):
                cst = (t-1)*16 + r - tt*16
                a(f"v_cmp_le_i32 vcc, {cst}, v12")
                a("s_nop 1")
                a(f"v_cndmask_b32 v{S[t*4+r]}, v13, v{S[t*4+r]}, vcc")
        softmax_regs(a, S, 14, 15, 90)
        for i in range(6):
            a(f"v_cvt_pk_bf16_f32 v{P+tt*6+i}, v{S[2*i]}, v{S[2*i+1]}")
    a(f"""
    s_lshl_b32 s24, s23, 18
    s_lshl_b32 s25, s22, 8
    s_add_u32 s24, s24, s25
    s_add_u32 s24, s24, {hex(OB)}
    v_lshlrev_b32 v12, 13, v2
    v_lshl_add_u32 v12, v3, 3, v12
    v_add_u32 v12, s24, v12
    v_add_u32 v13, {hex(16*8192)}, v12
    s_waitcnt vmcnt(0)
    """)
    OA = 80
    for et in range(8):
        r = 16 + et*6
        for tt in range(2):
            c = OA + tt*4
            for i in range(4):
                a(f"v_mov_b32 v{c+i}, 0")
            a("s_nop 1")
            a(f"v_mfma_f32_16x16x16_bf16 v[{c}:{c+3}], v[{r}:{r+1}], v[{P+tt*6}:{P+tt*6+1}], v[{c}:{c+3}]")
            a("s_nop 7")
            a(f"v_mfma_f32_16x16x32_bf16 v[{c}:{c+3}], v[{r+2}:{r+5}], v[{P+tt*6+2}:{P+tt*6+5}], v[{c}:{c+3}]")
        a("s_nop 7\ns_nop 1")
        for tt in range(2):
            c = OA + tt*4
            a(f"v_cvt_pk_bf16_f32 v{88+tt*2}, v{c}, v{c+1}")
            a(f"v_cvt_pk_bf16_f32 v{89+tt*2}, v{c+2}, v{c+3}")
            a(f"buffer_store_dwordx2 v[{88+tt*2}:{89+tt*2}], v{12+tt}, s[8:11], 0 offen offset:{et*32} sc1")
        a("s_nop 1")

NW = 224
def gen_worker_role(a, lend):
    a("""
    v_and_b32 v2, 15, v1
    v_lshrrev_b32 v3, 4, v1
    s_and_b32 s24, s20, 3
    s_lshr_b32 s42, s20, 2         ; half
    s_mov_b32 s43, s29
    """)
    lt = a.newlabel("gt"); lq = a.newlabel("gq"); lgo = a.newlabel("ggo"); ldone = a.newlabel("gdone")
    a.label(lt)
    a("s_cmp_ge_u32 s43, 768")
    a(f"s_cbranch_scc1 {ldone}")
    a("s_cmp_ge_u32 s43, 512")
    a(f"s_cbranch_scc1 {lq}")
    a(f"""
    s_lshr_b32 s44, s43, 5         ; mb
    s_and_b32 s45, s43, 31         ; h
    s_lshl_b32 s46, s45, 3         ; h*8 tiles
    s_lshl_b32 s47, s42, 8         ; half*256 : k -> 256.., v -> 512..
    s_add_u32 s46, s46, s47
    s_add_u32 s46, s46, 256        ; nt0
    s_lshl_b32 s47, s44, 7         ; m0
    s_lshl_b32 s48, s43, 2
    s_add_u32 s48, s48, {hex(FKV)}
    s_branch {lgo}
    """)
    a.label(lq)
    a(f"""
    s_sub_u32 s45, s43, 512
    s_lshr_b32 s44, s45, 4         ; mb
    s_and_b32 s45, s45, 15
    s_lshl_b32 s45, s45, 1
    s_add_u32 s45, s45, s42        ; h
    s_lshl_b32 s46, s45, 3         ; nt0
    s_lshl_b32 s47, s44, 7
    s_lshl_b32 s48, s44, 5
    s_add_u32 s48, s48, s45
    s_lshl_b32 s48, s48, 2
    s_add_u32 s48, s48, {hex(FQ)}
    """)
    a.label(lgo)
    worker_gemm(a, 46, 47, 48)
    a("s_waitcnt vmcnt(0)")
    a("s_barrier")
    lnf = a.newlabel("gnf")
    a("s_cmp_lg_u32 s24, 0")
    a(f"s_cbranch_scc1 {lnf}")
    a("s_cmp_ge_u32 s43, 512")
    lyes = a.newlabel("gy")
    a(f"s_cbranch_scc1 {lyes}")
    a("s_cmp_lg_u32 s42, 0")
    a(f"s_cbranch_scc1 {lnf}")
    a.label(lyes)
    a("v_mov_b32 v4, s48\nv_mov_b32 v5, 1")
    a("s_mov_b64 exec, 1")
    a("buffer_store_dword v5, v4, s[8:11], 0 offen sc1")
    a("s_mov_b64 exec, -1")
    a.label(lnf)
    a(f"s_add_u32 s43, s43, {NW}")
    a(f"s_branch {lt}")
    a.label(ldone)
    la = a.newlabel("pt"); lA = a.newlabel("pA"); lW = a.newlabel("pW"); lF1 = a.newlabel("pF1"); lF2 = a.newlabel("pF2"); lnext = a.newlabel("pn")
    lsa = [a.newlabel("sa") for _ in range(4)]

    a(f"""
    s_mov_b32 s49, 0
    s_mov_b32 s43, s29
    s_mov_b32 s42, 40
    s_mov_b32 s39, 256
    s_cmp_lt_u32 s29, 40
    s_cbranch_scc1 {la}
    s_mov_b32 s49, 1
    s_sub_u32 s43, s29, 40
    s_mov_b32 s42, 104
    s_mov_b32 s39, 1024
    s_cmp_lt_u32 s29, 144
    s_cbranch_scc1 {la}
    s_mov_b32 s49, 2
    s_sub_u32 s43, s29, 144
    s_mov_b32 s42, 40
    s_mov_b32 s39, 896
    s_cmp_lt_u32 s29, 184
    s_cbranch_scc1 {la}
    s_mov_b32 s49, 3
    s_sub_u32 s43, s29, 184
    s_mov_b32 s42, 40
    s_mov_b32 s39, 1024
    """)
    a.label(la)
    a("s_cmp_ge_u32 s43, s39")
    a(f"s_cbranch_scc1 {lend}")
    a(f"""
    s_lshr_b32 s44, s43, 2
    s_and_b32 s45, s43, 3
    s_cmp_eq_u32 s49, 0
    s_cbranch_scc1 {lA}
    s_lshr_b32 s44, s43, 4
    s_and_b32 s45, s43, 15
    s_cmp_eq_u32 s49, 1
    s_cbranch_scc1 {lW}
    s_cmp_eq_u32 s49, 3
    s_cbranch_scc1 {lF2}
    s_mul_i32 s44, s43, 4682
    s_lshr_b32 s44, s44, 16
    s_mul_i32 s45, s44, 14
    s_sub_u32 s45, s43, s45
    s_branch {lF1}
    """)
    def set_flag(sreg):
        l = a.newlabel("sf")
        a("s_waitcnt vmcnt(0)")
        a("s_barrier")
        a("s_cmp_lg_u32 s20, 0")
        a(f"s_cbranch_scc1 {l}")
        a(f"v_mov_b32 v4, s{sreg}\nv_mov_b32 v5, 1")
        a("s_mov_b64 exec, 1")
        a("buffer_store_dword v5, v4, s[8:11], 0 offen sc1")
        a("s_mov_b64 exec, -1")
        a.label(l)
    a.label(lA)
    a(f"""
    s_mov_b32 s23, s44               ; s
    s_lshl_b32 s46, s23, 2
    s_add_u32 s46, s46, s45
    s_lshl_b32 s46, s46, 2
    s_add_u32 s46, s46, {hex(FA)}
    s_lshl_b32 s22, s45, 3
    s_add_u32 s22, s22, s20          ; h
    s_lshl_b32 s21, s23, 5
    s_add_u32 s21, s21, s22
    s_lshl_b32 s21, s21, 2
    s_add_u32 s21, s21, {hex(FR)}
    """)
    wait_flag(a, 21, 16)
    a(f"""
    s_lshr_b32 s21, s23, 2
    s_lshl_b32 s21, s21, 5
    s_add_u32 s21, s21, s22
    s_lshl_b32 s21, s21, 2
    s_add_u32 s47, s21, {hex(FQ)}
    s_add_u32 s21, s21, {hex(FKV)}
    """)
    wait_flag(a, 21, 16)
    wait_flag(a, 47, 16)
    worker_attn(a)
    set_flag(46)
    a(f"s_branch {lnext}")

    def splitk_stage(A_off, lda, W_off, kk_per_wave, nwaves, w_nt_stride, w_kk_stride, is_w):
        a(f"""
        s_lshl_b32 s21, s44, 5            ; m0
        s_lshl_b32 s22, s45, 1            ; nt0
        v_add_u32 v4, s21, v2
        s_mov_b32 s23, {lda}
        v_mul_lo_u32 v4, v4, s23
        v_lshl_add_u32 v4, v3, 4, v4
        v_add_u32 v4, {hex(A_off)}, v4
        """)
        for mt in range(2):
            a(f"v_add_u32 v{8+mt}, {mt*16*lda}, v4")
        a(f"s_mul_i32 s25, s22, {w_nt_stride}")
        a(f"s_add_u32 s25, s25, {hex(W_off)}")
        a("v_lshl_add_u32 v4, v1, 4, s25")
        for nt in range(2):
            a(f"v_add_u32 v{12+nt}, {nt*w_nt_stride}, v4")
        a(f"s_mul_i32 s26, s20, {kk_per_wave*64}")
        a(f"s_mul_i32 s27, s20, {kk_per_wave*w_kk_stride}")
        XF, WF, ACC = 16, 48, 80
        lz = a.newlabel("skz"); lr = a.newlabel("skr")
        if nwaves < 8:
            a(f"s_cmp_ge_u32 s20, {nwaves}")
            a(f"s_cbranch_scc1 {lz}")
        gemm_loop(a, 2, 2, kk_per_wave, 8, True, [8,9], [12,13], XF, WF, ACC, 26, 27, 28, wstride=w_kk_stride, xsc1=True, D=4)
        if nwaves < 8:
            a(f"s_branch {lr}")
            a.label(lz)
            for i in range(16):
                a(f"v_mov_b32 v{ACC+i}, 0")
            a.label(lr)
        a("s_lshl_b32 s25, s20, 12")
        a("v_lshl_add_u32 v4, v1, 4, s25")
        for q in range(4):
            a(f"ds_write_b128 v4, v[{ACC+q*4}:{ACC+q*4+3}] offset:{q*1024}")
        a("s_waitcnt lgkmcnt(0)")
        a("s_barrier")
        lsk = a.newlabel("sks")
        a("s_cmp_ge_u32 s20, 4")
        a(f"s_cbranch_scc1 {lsk}")
        a("s_lshl_b32 s25, s20, 10")
        a("v_lshl_add_u32 v4, v1, 4, s25")
        for v in range(8):
            r = 16 + v*4
            a(f"ds_read_b128 v[{r}:{r+3}], v4 offset:{v*4096}")
        a(f"""
        s_and_b32 s25, s20, 1
        s_lshl_b32 s25, s25, 4
        s_add_u32 s25, s25, s21
        v_add_u32 v5, s25, v2
        v_lshlrev_b32 v5, 10, v5
        s_lshr_b32 s25, s20, 1
        s_add_u32 s25, s25, s22
        s_lshl_b32 s25, s25, 5
        v_lshl_add_u32 v5, v3, 3, v5
        v_add_u32 v5, s25, v5
        v_add_u32 v6, {hex(HB)}, v5
        """)
        if is_w:
            a("buffer_load_dwordx2 v[96:97], v5, s[12:15], 0 offen")
        else:
            a("buffer_load_dwordx2 v[96:97], v6, s[8:11], 0 offen sc1")
        a("s_waitcnt vmcnt(0) lgkmcnt(0)")
        for c in range(4):
            for v in range(1, 8):
                a(f"v_add_f32 v{16+c}, v{16+c}, v{16+c+v*4}")
        a("v_cvt_pk_bf16_f32 v90, v16, v17")
        a("v_cvt_pk_bf16_f32 v91, v18, v19")
        for j in range(2):
            a(f"v_lshlrev_b32 v92, 16, v{90+j}")
            a(f"v_and_b32 v93, 0xffff0000, v{90+j}")
            a(f"v_lshlrev_b32 v94, 16, v{96+j}")
            a(f"v_and_b32 v95, 0xffff0000, v{96+j}")
            a("v_add_f32 v92, v92, v94")
            a("v_add_f32 v93, v93, v95")
            a(f"v_cvt_pk_bf16_f32 v{100+j}, v92, v93")
        if is_w:
            a("buffer_store_dwordx2 v[100:101], v6, s[8:11], 0 offen sc1")
        else:
            a("buffer_store_dwordx2 v[100:101], v5, s[16:19], 0 offen")
        a.label(lsk)
    a.label(lW)
    a(f"""
    s_and_b32 s22, s20, 3
    s_lshl_b32 s21, s44, 2
    s_add_u32 s21, s21, s22
    s_lshl_b32 s21, s21, 2
    s_add_u32 s21, s21, {hex(FA)}
    """)
    wait_flag(a, 21, 16)
    a("s_barrier")
    splitk_stage(OB, 8192, WO, 16, 8, 128*1024, 1024, True)
    a(f"s_lshl_b32 s46, s44, 4\ns_add_u32 s46, s46, s45\ns_lshl_b32 s46, s46, 2\ns_add_u32 s46, s46, {hex(FH)}")
    set_flag(46)
    a(f"s_branch {lnext}")
    a.label(lF1)
    a(f"""
    s_lshl_b32 s21, s44, 4
    s_add_u32 s21, s21, s20
    s_lshl_b32 s21, s21, 2
    s_add_u32 s21, s21, {hex(FH)}
    """)
    wait_flag(a, 21, 16)
    a("s_add_u32 s21, s21, 32")
    wait_flag(a, 21, 16)
    a("s_barrier")
    for i in range(4):
        a(f"s_lshl_b32 s21, s44, 5\ns_lshl_b32 s22, s20, 2\ns_add_u32 s21, s21, s22\ns_add_u32 s21, s21, {i}")
        a("v_mov_b32 v4, s21")
        a(f"s_lshl_b32 s22, s20, 2\ns_add_u32 s22, s22, {i}\ns_mul_i32 s22, s22, 1040")
        a("v_lshl_add_u32 v40, v1, 4, s22")
        emit_ln_row(a, 8, HB, 8, 0, 4, sc1=True, lds_addr=40)
    a("v_and_b32 v2, 15, v1\nv_lshrrev_b32 v3, 4, v1")
    a("s_waitcnt lgkmcnt(0)")
    a("s_barrier")
    a(f"""
    s_lshl_b32 s22, s45, 3
    s_add_u32 s22, s22, s20
    s_mov_b32 s23, 1040
    v_mul_lo_u32 v4, v2, s23
    v_lshl_add_u32 v4, v3, 4, v4
    """)
    for mt in range(2):
        a(f"v_add_u32 v{8+mt}, {mt*16*1040}, v4")
    a("s_lshl_b32 s25, s22, 14")
    a("v_lshl_add_u32 v4, v1, 4, s25")
    a(f"v_add_u32 v12, {hex(WG)}, v4")
    a(f"v_add_u32 v13, {hex(WU)}, v4")
    a("s_mov_b32 s26, 0\ns_mov_b32 s27, 0")
    XF, WF, ACC = 16, 48, 80
    gemm_loop(a, 2, 2, 16, 8, True, [8,9], [12,13], XF, WF, ACC, 26, 27, 28, xlds=True, D=4)
    a(f"""
    s_lshl_b32 s21, s44, 5
    v_add_u32 v4, s21, v2
    s_mov_b32 s25, 3584
    v_mul_lo_u32 v4, v4, s25
    s_lshl_b32 s25, s22, 5
    v_lshl_add_u32 v4, v3, 3, v4
    v_add_u32 v4, s25, v4
    v_add_u32 v4, {hex(HH)}, v4
    """)
    for mt in range(2):
        cg = ACC + mt*4
        cu = ACC + (2+mt)*4
        o = 16 + mt*2
        for j in range(2):
            a(f"v_cvt_pk_bf16_f32 v20, v{cg+2*j}, v{cg+2*j+1}")
            a(f"v_cvt_pk_bf16_f32 v21, v{cu+2*j}, v{cu+2*j+1}")
            a("v_lshlrev_b32 v22, 16, v20")
            a("v_and_b32 v23, 0xffff0000, v20")
            a("v_lshlrev_b32 v24, 16, v21")
            a("v_and_b32 v25, 0xffff0000, v21")
            a("v_mul_f32 v22, v22, v24")
            a("v_mul_f32 v23, v23, v25")
            a(f"v_cvt_pk_bf16_f32 v{o+j}, v22, v23")
        a(f"buffer_store_dwordx2 v[{o}:{o+1}], v4, s[8:11], 0 offen sc1")
        if mt < 1:
            a(f"v_add_u32 v4, {16*3584}, v4")
    a(f"s_lshl_b32 s46, s44, 4\ns_add_u32 s46, s46, s45\ns_lshl_b32 s46, s46, 2\ns_add_u32 s46, s46, {hex(FF)}")
    set_flag(46)
    a(f"s_branch {lnext}")
    a.label(lF2)
    a(f"""
    s_lshl_b32 s21, s44, 4
    s_add_u32 s22, s21, s20
    s_lshl_b32 s22, s22, 2
    s_add_u32 s22, s22, {hex(FF)}
    """)
    wait_flag(a, 22, 16)
    a(f"""
    s_add_u32 s22, s22, 32
    s_add_u32 s21, s21, s45
    s_lshl_b32 s21, s21, 2
    s_add_u32 s21, s21, {hex(FH)}
    s_cmp_lt_u32 s20, 6
    s_cselect_b32 s21, s22, s21
    """)
    wait_flag(a, 21, 16)
    a("s_barrier")
    splitk_stage(HH, 3584, WD, 8, 7, 1024, 32*1024, False)
    a("s_barrier")
    a.label(lnext)
    a("s_add_u32 s43, s43, s42")
    a(f"s_branch {la}")

def gen_mega(a):
    name = "mega_kernel"
    kernel_header(a, name)
    lend = a.newlabel("mend")
    lwk = a.newlabel("mwk")
    lexit = a.newlabel("mexit")
    a(f"""
    s_cmp_ge_u32 s2, 256
    s_cbranch_scc1 {lexit}
    s_load_dwordx2 s[4:5], s[0:1], {KA_WS}
    s_load_dwordx2 s[6:7], s[0:1], {KA_X}
    s_load_dwordx2 s[22:23], s[0:1], {KA_OUT}
    v_and_b32 v1, 63, v0
    v_lshrrev_b32 v2, 6, v0
    s_nop 0
    v_readfirstlane_b32 s20, v2
    s_waitcnt lgkmcnt(0)
    """)
    srd(a, 8, 4, WS_BYTES)
    srd(a, 12, 6, 2 * MB)
    srd(a, 16, 22, 2 * MB)
    if STAMP:
        a("s_mov_b32 s99, s2\ns_memrealtime s[50:51]\ns_waitcnt lgkmcnt(0)\ns_mov_b32 s98, s50")
    a(f"""
    s_and_b32 s3, s2, 7
    s_lshr_b32 s21, s2, 3
    s_cmp_lg_u32 s3, 0
    s_cbranch_scc1 {lwk}
    s_mov_b32 s2, s21
    """)
    gen_rec_role(a, lend)
    a.label(lwk)
    a("s_mul_i32 s29, s21, 7\ns_add_u32 s29, s29, s3\ns_sub_u32 s29, s29, 1")
    gen_worker_role(a, lend)
    a.label(lend)
    if STAMP:
        a(f"""
        s_memrealtime s[50:51]
        s_lshl_b32 s52, s99, 3
        s_add_u32 s52, s52, {hex(DBGW + (1<<20))}
        s_waitcnt lgkmcnt(0)
        s_mov_b64 exec, 1
        v_mov_b32 v0, s50
        v_mov_b32 v2, s52
        buffer_store_dword v0, v2, s[8:11], 0 offen
        v_mov_b32 v0, s98
        buffer_store_dword v0, v2, s[8:11], 0 offen offset:4
        """)
    a.label(lexit)
    a("s_endpgm")
    return kernel_desc(name, 256)
```
